```python
import torch

def _softmax(x, axis=-1):
    return torch.softmax(x, dim=axis)
def _gelu(x):
    return torch.nn.functional.gelu(x, approximate="tanh")
def _silu(x):
    return torch.nn.functional.silu(x)
def _sigmoid(x):
    return torch.sigmoid(x)
def _layernorm(x, axis=-1, eps=1e-5):
    m = x.mean(dim=axis, keepdim=True)
    v = x.var(dim=axis, keepdim=True, unbiased=False)
    return (x - m) / torch.sqrt(v + eps)
def _scatter_add(tgt, idx, src, axis=0):
    return tgt.clone().index_add_(axis, idx, src)
def _segment_sum(src, seg, n):
    out = torch.zeros((n,) + src.shape[1:], dtype=src.dtype)
    return out.index_add_(0, seg, src)
def _pad(x, pw):
    flat = tuple(v for pair in reversed(pw) for v in pair)
    return torch.nn.functional.pad(x, flat)

kernel_name = 'sequential_preLN__compressed_kv_cla__dense_activation_gelu__prompt'

def setup_inputs():

    _w = (lambda a: (lambda t: t.to(torch.bfloat16) if t.is_floating_point() else t)(torch.as_tensor(a)))
    def _A_setup():
        B, H, Sq, Sk, D, M = 1, 32, 2048, 2048, 128, 512
        Dc = 4 * D
        return {
            "x": _w((lambda *s: torch.randn(*s, dtype=torch.bfloat16) * 0.05)(B, Sq, M)),
            "c_kv": _w((lambda *s: torch.randn(*s, dtype=torch.bfloat16) * 0.2)(B, Sk, Dc)),
            "w_q": _w((lambda *s: torch.randn(*s, dtype=torch.bfloat16) * 6.4)(M, H, D) * (M ** -0.5)),
            "w_uk": _w((lambda *s: torch.randn(*s, dtype=torch.bfloat16) * 12.8)(Dc, H, D) * (Dc ** -0.5)),
            "w_uv": _w((lambda *s: torch.randn(*s, dtype=torch.bfloat16) * 0.2)(Dc, H, D) * (Dc ** -0.5)),
            "w_o": _w((lambda *s: torch.randn(*s, dtype=torch.bfloat16) * 0.2)(H, D, M) * ((H * D) ** -0.5)),
        }
    _A_in = _A_setup()

    def _B_setup():
        B, S, D, F = 1, 2048, 512, 1376
        return {
            "x": _w((lambda *s: torch.randn(*s, dtype=torch.bfloat16) * 0.05)(B, S, D)),
            "w1": _w((lambda *s: torch.randn(*s, dtype=torch.bfloat16) * 0.4)(D, F) * (D ** -0.5)),
            "b1": _w((lambda *s: torch.randn(*s, dtype=torch.bfloat16) * 12.8)(F) * 0.01),
            "w2": _w((lambda *s: torch.randn(*s, dtype=torch.bfloat16) * 0.2)(F, D) * (F ** -0.5)),
            "b2": _w((lambda *s: torch.randn(*s, dtype=torch.bfloat16) * 1.6)(D) * 0.01),
        }
    _B_in = _B_setup()

    return {
        "A_x": _A_in["x"],
        "A_c_kv": _A_in["c_kv"],
        "A_w_q": _A_in["w_q"],
        "A_w_uk": _A_in["w_uk"],
        "A_w_uv": _A_in["w_uv"],
        "A_w_o": _A_in["w_o"],
        "B_x": _B_in["x"],
        "B_w1": _B_in["w1"],
        "B_b1": _B_in["b1"],
        "B_w2": _B_in["w2"],
        "B_b2": _B_in["b2"],
    }

def reference(A_x, A_c_kv, A_w_q, A_w_uk, A_w_uv, A_w_o, B_x, B_w1, B_b1, B_w2, B_b2):
    def _A_ref(x, c_kv, w_q, w_uk, w_uv, w_o):
        B, Sq, M = x.shape[0], x.shape[1], x.shape[2]
        Sk = c_kv.shape[1]
        H, D = w_q.shape[1], w_q.shape[2]
        q = torch.einsum("bqm,mhd->bhqd", x, w_q)
        k = torch.einsum("bkc,chd->bhkd", c_kv, w_uk)
        v = torch.einsum("bkc,chd->bhkd", c_kv, w_uv)
        scores = torch.einsum("bhqd,bhkd->bhqk", q, k) * (D ** -0.5)
        off = Sk - Sq
        qi = torch.arange(Sq)[:, None]
        kj = torch.arange(Sk)[None, :]
        cmask = kj <= (qi + off)
        scores = torch.where(cmask[None, None], scores, -1e9)
        p = _softmax(scores, axis=-1)
        ctx = torch.einsum("bhqk,bhkd->bhqd", p, v)
        return torch.einsum("bhqd,hdm->bqm", ctx, w_o)

    def _B_ref(x, w1, b1, w2, b2):
        h = torch.einsum("bsd,df->bsf", x, w1) + b1
        h = _gelu(h)
        return torch.einsum("bsf,fd->bsd", h, w2) + b2

    x = A_x
    h = x + _A_ref(_layernorm(x, axis=-1), A_c_kv, A_w_q, A_w_uk, A_w_uv, A_w_o)
    h2 = h + _B_ref(_layernorm(h, axis=-1), B_w1, B_b1, B_w2, B_b2)
    return h2
```

```python
import sys

KNAME = "sequential_preLN__compressed_kv_cla__dense_activation_gelu__prompt"

SL_X, SL_CKV, SL_WQ, SL_WUK, SL_WUV, SL_WO, SL_BX, SL_W1, SL_B1, SL_W2, SL_B2, SL_OUT, SL_DBG, SL_WS = range(14)

WS_XN = 0x0000000
WS_HN = 0x0200000
WS_H = 0x0400000
WS_G = 0x0600000
WS_Q = 0x1000000
WS_K = 0x2000000
WS_V = 0x3000000
WS_CTX = 0x4000000
WS_PART = 0x5000000

S = 2048
DM = 512
NH = 32
HD = 128
FF = 1376
KSPLIT = 4


class Kern:
    def __init__(self, name):
        self.name = name
        self.L = []

    def e(self, s):
        self.L.append("    " + s)

    def label(self, s):
        self.L.append(s + ":")

    def text(self):
        return "\n".join(self.L) + "\n"


def srd_from(k, dst, ptr, off, nbytes):
    lo, hi = ptr
    if isinstance(off, int) and off == 0:
        k.e(f"s_mov_b32 s{dst}, s{lo}")
        k.e(f"s_and_b32 s{dst+1}, s{hi}, 0xffff")
    else:
        o = f"0x{off:x}" if isinstance(off, int) else off
        k.e(f"s_add_u32 s{dst}, s{lo}, {o}")
        k.e(f"s_addc_u32 s{dst+1}, s{hi}, 0")
        k.e(f"s_and_b32 s{dst+1}, s{dst+1}, 0xffff")
    n = f"0x{nbytes:x}" if isinstance(nbytes, int) else nbytes
    k.e(f"s_mov_b32 s{dst+2}, {n}")
    k.e(f"s_mov_b32 s{dst+3}, 0x00020000")


def kernel_footer(name, vgpr, sgpr):
    acc = (vgpr + 3) // 4 * 4
    return f"""    s_endpgm
.section .rodata,"a"
.p2align 6
.amdhsa_kernel {name}
  .amdhsa_next_free_vgpr {vgpr}
  .amdhsa_next_free_sgpr {sgpr}
  .amdhsa_accum_offset {acc}
  .amdhsa_group_segment_fixed_size 0
  .amdhsa_kernarg_size 112
  .amdhsa_user_sgpr_count 2
  .amdhsa_user_sgpr_kernarg_segment_ptr 1
  .amdhsa_system_sgpr_workgroup_id_x 1
.end_amdhsa_kernel
.text
"""


def kernel_header(name):
    return f""".globl {name}
.p2align 8
.type {name},@function
{name}:
"""


def round_pair(k, a, b, t):
    k.e(f"v_cvt_pk_bf16_f32 v{t}, v{a}, v{b}")
    k.e(f"v_lshlrev_b32 v{a}, 16, v{t}")
    k.e(f"v_and_b32 v{b}, 0xffff0000, v{t}")


def round_one(k, a):
    k.e(f"v_cvt_pk_bf16_f32 v{a}, v{a}, v{a}")
    k.e(f"v_lshlrev_b32 v{a}, 16, v{a}")


def unpack(k, src, d0, d1):
    k.e(f"v_lshlrev_b32 v{d0}, 16, v{src}")
    k.e(f"v_and_b32 v{d1}, 0xffff0000, v{src}")


def gen_ln(name, mode):
    k = Kern(name)
    e = k.e
    VP = 48

    def allsum(v, t):
        for h in range(6):
            e(f"ds_bpermute_b32 v{t}, v{VP+h}, v{v}")
            e("s_waitcnt lgkmcnt(0)")
            e(f"v_add_f32 v{v}, v{v}, v{t}")

    e("s_cmp_ge_u32 s2, 512")
    e(f"s_cbranch_scc1 {name}_done")
    e(f"s_load_dwordx2 s[4:5], s[0:1], {SL_X*8}")
    e(f"s_load_dwordx2 s[6:7], s[0:1], {SL_WS*8}")
    e("v_lshrrev_b32 v1, 6, v0")
    e("v_and_b32 v2, 63, v0")
    e("s_lshl_b32 s3, s2, 2")
    e("v_add_u32 v1, s3, v1")
    e("v_lshlrev_b32 v3, 10, v1")
    e("v_lshl_add_u32 v3, v2, 4, v3")
    for h in range(6):
        e(f"v_xor_b32 v{VP+h}, {1<<h}, v2")
        e(f"v_lshlrev_b32 v{VP+h}, 2, v{VP+h}")
    e("s_waitcnt lgkmcnt(0)")
    srd_from(k, 8, (4, 5), 0, S * DM * 2)
    if mode == 'ln1':
        srd_from(k, 12, (6, 7), WS_XN, S * DM * 2)
    else:
        srd_from(k, 12, (6, 7), WS_HN, S * DM * 2)
        srd_from(k, 16, (6, 7), WS_H, S * DM * 2)
        srd_from(k, 20, (6, 7), WS_PART, KSPLIT * S * DM * 4)
    e("buffer_load_dwordx4 v[4:7], v3, s[8:11], 0 offen")
    if mode == 'ln2':
        e("v_lshlrev_b32 v54, 11, v1")
        e("v_lshl_add_u32 v54, v2, 5, v54")
        for p in range(KSPLIT):
            e(f"s_mov_b32 s24, 0x{p*S*DM*4:x}")
            e(f"buffer_load_dwordx4 v[{16+8*p}:{19+8*p}], v54, s[20:23], s24 offen")
            e(f"buffer_load_dwordx4 v[{20+8*p}:{23+8*p}], v54, s[20:23], s24 offen offset:16")
    e("s_waitcnt vmcnt(0)")
    for i in range(4):
        unpack(k, 4 + i, 8 + 2 * i, 9 + 2 * i)
    if mode == 'ln2':
        for i in range(8):
            e(f"v_add_f32 v{16+i}, v{16+i}, v{24+i}")
            e(f"v_add_f32 v{32+i}, v{32+i}, v{40+i}")
        for i in range(8):
            e(f"v_add_f32 v{16+i}, v{16+i}, v{32+i}")
        for i in range(4):
            round_pair(k, 16 + 2 * i, 17 + 2 * i, 55)
        for i in range(8):
            e(f"v_add_f32 v{8+i}, v{8+i}, v{16+i}")
        for i in range(4):
            e(f"v_cvt_pk_bf16_f32 v{4+i}, v{8+2*i}, v{9+2*i}")
        for i in range(4):
            unpack(k, 4 + i, 8 + 2 * i, 9 + 2 * i)
        e("buffer_store_dwordx4 v[4:7], v3, s[16:19], 0 offen")
    e("v_add_f32 v16, v8, v9")
    for i in range(2, 8):
        e(f"v_add_f32 v16, v16, v{8+i}")
    allsum(16, 17)
    e("s_mov_b32 s24, 0x3b000000")
    e("v_mul_f32 v16, s24, v16")
    e("v_sub_f32 v18, v8, v16")
    e("v_mul_f32 v19, v18, v18")
    for i in range(1, 8):
        e(f"v_sub_f32 v18, v{8+i}, v16")
        e("v_fma_f32 v19, v18, v18, v19")
    allsum(19, 17)
    e("v_mul_f32 v19, s24, v19")
    round_one(k, 16)
    round_one(k, 19)
    e("s_mov_b32 s25, 0x3727c5ac")
    e("v_add_f32 v19, s25, v19")
    round_one(k, 19)
    e("v_sqrt_f32 v19, v19")
    e("s_nop 0")
    round_one(k, 19)
    e("v_rcp_f32 v19, v19")
    for i in range(4):
        e(f"v_sub_f32 v{8+2*i}, v{8+2*i}, v16")
        e(f"v_sub_f32 v{9+2*i}, v{9+2*i}, v16")
        round_pair(k, 8 + 2 * i, 9 + 2 * i, 17)
        e(f"v_mul_f32 v{8+2*i}, v{8+2*i}, v19")
        e(f"v_mul_f32 v{9+2*i}, v{9+2*i}, v19")
        e(f"v_cvt_pk_bf16_f32 v{4+i}, v{8+2*i}, v{9+2*i}")
    e("buffer_store_dwordx4 v[4:7], v3, s[12:15], 0 offen")
    k.label(f"{name}_done")
    return kernel_header(name) + k.text() + kernel_footer(name, 64, 32)


def gen_gemm(name, BM, NS, decode, setup_ptrs, lda, ldw, epi, nwg):
    BN = 128
    MT = BM // 64
    NT = 2
    k = Kern(name)
    e = k.e
    A_BYTES = BM * 128
    W_BYTES = 64 * 256
    STG = A_BYTES + W_BYTES
    nA = BM // 32
    nW = 4
    ACC = 0
    nacc = MT * NT * 16
    FR = nacc
    fsz = MT * 4 + NT * 4
    VA = FR + 2 * fsz
    VW = VA + nA
    VXR = VW + nW
    VWR = VXR + 4
    VT = VWR + NT
    VL = VT + 8
    VWV = VL + 1
    nv = VWV + 24

    def acc(mt, nt):
        return ACC + (mt * NT + nt) * 16

    def xfr(set_, mt):
        return FR + set_ * fsz + mt * 4

    def wfr(set_, nt):
        return FR + set_ * fsz + MT * 4 + nt * 4

    e(f"s_cmp_ge_u32 s2, {nwg}")
    e(f"s_cbranch_scc1 {name}_done")
    e(f"v_and_b32 v{VL}, 63, v0")
    e(f"v_lshrrev_b32 v{VT}, 6, v0")
    e("s_nop 0")
    e(f"v_readfirstlane_b32 s28, v{VT}")
    decode(k)
    setup_ptrs(k)
    L = VL
    for j in range(nA):
        v = VA + j
        e(f"s_mul_i32 s32, s28, {nA}")
        e(f"s_add_u32 s32, s32, {j}")
        e(f"v_lshrrev_b32 v{VT}, 3, v{L}")
        e(f"s_lshl_b32 s33, s32, 3")
        e(f"v_add_u32 v{VT}, s33, v{VT}")
        e(f"v_lshrrev_b32 v{VT+1}, 1, v{VT}")
        e(f"v_and_b32 v{VT+1}, 7, v{VT+1}")
        e(f"v_and_b32 v{VT+2}, 7, v{L}")
        e(f"v_xor_b32 v{VT+1}, v{VT+1}, v{VT+2}")
        e(f"v_lshlrev_b32 v{VT+1}, 4, v{VT+1}")
        e(f"s_mov_b32 s33, {lda}")
        e(f"v_mul_lo_u32 v{v}, v{VT}, s33")
        e(f"v_add_u32 v{v}, v{v}, v{VT+1}")
    for j in range(nW):
        v = VW + j
        e(f"s_lshl_b32 s32, s28, 2")
        e(f"s_add_u32 s32, s32, {j}")
        e(f"v_lshrrev_b32 v{VT}, 4, v{L}")
        e(f"v_lshlrev_b32 v{VT+1}, 2, v{VT}")
        e(f"s_lshl_b32 s33, s32, 2")
        e(f"v_add_u32 v{VT}, s33, v{VT}")
        e(f"v_and_b32 v{VT+2}, 15, v{L}")
        e(f"v_xor_b32 v{VT+1}, v{VT+1}, v{VT+2}")
        e(f"v_lshlrev_b32 v{VT+1}, 4, v{VT+1}")
        e(f"s_mov_b32 s33, {ldw}")
        e(f"v_mul_lo_u32 v{v}, v{VT}, s33")
        e(f"v_add_u32 v{v}, v{v}, v{VT+1}")
    e("s_lshr_b32 s34, s28, 1")
    e("s_and_b32 s35, s28, 1")
    e(f"v_and_b32 v{VT}, 31, v{L}")
    e(f"s_mul_i32 s32, s34, {BM//2}")
    e(f"v_add_u32 v{VT}, s32, v{VT}")
    e(f"v_lshrrev_b32 v{VT+1}, 1, v{VT}")
    e(f"v_and_b32 v{VT+1}, 7, v{VT+1}")
    e(f"v_lshrrev_b32 v{VT+2}, 5, v{L}")
    e(f"v_xor_b32 v{VT+1}, v{VT+1}, v{VT+2}")
    e(f"v_lshlrev_b32 v{VT+1}, 4, v{VT+1}")
    e(f"v_lshl_add_u32 v{VXR}, v{VT}, 7, v{VT+1}")
    for s in range(1, 4):
        e(f"v_xor_b32 v{VXR+s}, {32*s}, v{VXR}")
    e(f"v_lshrrev_b32 v{VT}, 5, v{L}")
    e(f"v_lshlrev_b32 v{VT}, 3, v{VT}")
    e(f"v_bfe_u32 v{VT+1}, v{L}, 2, 2")
    e(f"v_add_u32 v{VT}, v{VT}, v{VT+1}")
    e(f"v_lshlrev_b32 v{VT}, 8, v{VT}")
    e(f"v_bfe_u32 v{VT+2}, v{L}, 4, 1")
    e(f"v_lshlrev_b32 v{VT+2}, 5, v{VT+2}")
    e(f"v_and_b32 v{VT+3}, 3, v{L}")
    e(f"v_lshl_add_u32 v{VT+2}, v{VT+3}, 3, v{VT+2}")
    e(f"v_add_u32 v{VT}, v{VT}, v{VT+2}")
    for nt in range(NT):
        e(f"s_lshl_b32 s32, s35, 1")
        e(f"s_add_u32 s32, s32, {nt}")
        e(f"v_xor_b32 v{VT+3}, s32, v{VT+1}")
        e(f"v_lshl_add_u32 v{VWR+nt}, v{VT+3}, 6, v{VT}")
    for i in range(nacc):
        e(f"v_mov_b32 v{ACC+i}, 0")
    e(f"s_mul_i32 s36, s28, {nA*1024}")
    e(f"s_lshl_b32 s37, s28, 12")
    e(f"s_add_u32 s37, s37, {A_BYTES}")
    e("s_mov_b32 s38, 0")
    e("s_mov_b32 s39, 0")

    def issue(buf):
        base = buf * STG
        for j in range(nA):
            e(f"s_add_u32 m0, s36, {base + j*1024}")
            e("s_nop 0")
            e(f"buffer_load_dwordx4 v{VA+j}, s[8:11], s38 offen lds")
        for j in range(nW):
            e(f"s_add_u32 m0, s37, {base + j*1024}")
            e("s_nop 0")
            e(f"buffer_load_dwordx4 v{VW+j}, s[12:15], s39 offen lds")
        e("s_add_u32 s38, s38, 128")
        e(f"s_add_u32 s39, s39, {64*ldw}")

    def read_frags(buf, s, set_):
        base = buf * STG
        for mt in range(MT):
            e(f"ds_read_b128 v[{xfr(set_,mt)}:{xfr(set_,mt)+3}], v{VXR+s} offset:{base + mt*4096}")
        for nt in range(NT):
            w = wfr(set_, nt)
            e(f"ds_read_b64_tr_b16 v[{w}:{w+1}], v{VWR+nt} offset:{base + A_BYTES + s*4096}")
            e(f"ds_read_b64_tr_b16 v[{w+2}:{w+3}], v{VWR+nt} offset:{base + A_BYTES + s*4096 + 1024}")

    nfr = MT + 2 * NT

    def compute(buf):
        read_frags(buf, 0, 0)
        for s in range(4):
            if s < 3:
                read_frags(buf, s + 1, (s + 1) % 2)
                e(f"s_waitcnt lgkmcnt({nfr})")
            else:
                e("s_waitcnt lgkmcnt(0)")
            st = s % 2
            for mt in range(MT):
                for nt in range(NT):
                    a = acc(mt, nt)
                    e(f"v_mfma_f32_32x32x16_bf16 v[{a}:{a+15}], v[{wfr(st,nt)}:{wfr(st,nt)+3}], "
                      f"v[{xfr(st,mt)}:{xfr(st,mt)+3}], v[{a}:{a+15}]")

    issue(0)
    e(f"s_mov_b32 s40, {NS//2}")
    k.label(f"{name}_loop")
    e("s_waitcnt vmcnt(0)")
    e("s_barrier")
    issue(1)
    compute(0)
    e("s_waitcnt vmcnt(0)")
    e("s_barrier")
    e("s_sub_u32 s40, s40, 1")
    e("s_cmp_eq_u32 s40, 0")
    e(f"s_cbranch_scc1 {name}_last")
    issue(0)
    compute(1)
    e(f"s_branch {name}_loop")
    k.label(f"{name}_last")
    compute(1)
    e("s_nop 15")
    e("s_nop 3")
    if epi['kind'] == 'f32':
        ldo = epi['ldo']
        e(f"v_and_b32 v{VT}, 31, v{L}")
        e(f"s_mul_i32 s32, s34, {BM//2}")
        e(f"v_add_u32 v{VT}, s32, v{VT}")
        e(f"s_mov_b32 s33, {ldo}")
        e(f"v_mul_lo_u32 v{VT}, v{VT}, s33")
        e(f"v_lshrrev_b32 v{VT+1}, 5, v{L}")
        e(f"v_lshl_add_u32 v{VT}, v{VT+1}, 4, v{VT}")
        e(f"s_lshl_b32 s32, s35, 8")
        e(f"v_add_u32 v{VT}, s32, v{VT}")
        for mt in range(MT):
            if mt:
                e(f"v_add_u32 v{VT}, {32*ldo}, v{VT}")
            for nt in range(NT):
                for q in range(4):
                    a = acc(mt, nt) + 4 * q
                    e(f"buffer_store_dwordx4 v[{a}:{a+3}], v{VT}, s[16:19], 0 offen offset:{(32*nt+8*q)*4}")
    else:
        PAD = 272
        e("s_barrier")
        if epi.get('bias'):
            e(f"v_lshrrev_b32 v{VT}, 5, v{L}")
            e(f"v_lshlrev_b32 v{VT}, 3, v{VT}")
            e(f"s_lshl_b32 s32, s35, 7")
            e(f"v_add_u32 v{VT}, s32, v{VT}")
            for nt in range(NT):
                for q in range(4):
                    b = FR + (nt * 4 + q) * 2
                    e(f"buffer_load_dwordx2 v[{b}:{b+1}], v{VT}, s[20:23], 0 offen offset:{(32*nt+8*q)*2}")
            e("s_waitcnt vmcnt(0)")
        e(f"v_and_b32 v{VT}, 31, v{L}")
        e(f"s_mul_i32 s32, s34, {BM//2}")
        e(f"v_add_u32 v{VT}, s32, v{VT}")
        e(f"v_mul_u32_u24 v{VT}, {PAD}, v{VT}")
        e(f"v_lshrrev_b32 v{VT+1}, 5, v{L}")
        e(f"v_lshl_add_u32 v{VT}, v{VT+1}, 3, v{VT}")
        e(f"s_lshl_b32 s32, s35, 7")
        e(f"v_add_u32 v{VT}, s32, v{VT}")
        if epi.get('gelu'):
            e("s_mov_b32 s41, 0xc0135761")
            e("s_mov_b32 s42, 0x3d372713")
        for mt in range(MT):
            for nt in range(NT):
                for q in range(4):
                    a = acc(mt, nt) + 4 * q
                    if epi.get('bias') or epi.get('gelu'):
                        round_pair(k, a, a + 1, VT + 2)
                        round_pair(k, a + 2, a + 3, VT + 2)
                    if epi.get('bias'):
                        b = FR + (nt * 4 + q) * 2
                        unpack(k, b, VT + 2, VT + 3)
                        unpack(k, b + 1, VT + 4, VT + 5)
                        for i in range(4):
                            e(f"v_add_f32 v{a+i}, v{a+i}, v{VT+2+i}")
                        if epi.get('gelu'):
                            round_pair(k, a, a + 1, VT + 2)
                            round_pair(k, a + 2, a + 3, VT + 2)
                    if epi.get('gelu'):
                        for i in range(4):
                            x = a + i
                            t = VT + 2 + i
                            e(f"v_mul_f32 v{t}, v{x}, v{x}")
                            e(f"v_fma_f32 v{t}, v{t}, s42, 1.0")
                            e(f"v_mul_f32 v{t}, v{t}, v{x}")
                            e(f"v_mul_f32 v{t}, s41, v{t}")
                            e(f"v_exp_f32 v{t}, v{t}")
                        e("s_nop 0")
                        for i in range(4):
                            t = VT + 2 + i
                            e(f"v_add_f32 v{t}, 1.0, v{t}")
                            e(f"v_rcp_f32 v{t}, v{t}")
                        e("s_nop 0")
                        for i in range(4):
                            e(f"v_mul_f32 v{a+i}, v{a+i}, v{VT+2+i}")
                    e(f"v_cvt_pk_bf16_f32 v{a}, v{a}, v{a+1}")
                    e(f"v_cvt_pk_bf16_f32 v{a+1}, v{a+2}, v{a+3}")
                    e(f"ds_write_b64 v{VT}, v[{a}:{a+1}] offset:{mt*32*PAD + (32*nt+8*q)*2}")
        e("s_waitcnt lgkmcnt(0)")
        e("s_barrier")
        ldo = epi['ldo']
        nrow = BM // 16
        e(f"v_lshrrev_b32 v{VT}, 4, v0")
        k.L.pop()
        e(f"s_lshl_b32 s32, s28, 6")
        e(f"v_add_u32 v{VT+6}, s32, v{L}")
        e(f"v_lshrrev_b32 v{VT}, 4, v{VT+6}")
        e(f"v_and_b32 v{VT+1}, 15, v{VT+6}")
        e(f"v_mul_u32_u24 v{VT+2}, {PAD}, v{VT}")
        e(f"v_lshl_add_u32 v{VT+2}, v{VT+1}, 4, v{VT+2}")
        e(f"s_mov_b32 s33, {ldo}")
        e(f"v_mul_lo_u32 v{VT+3}, v{VT}, s33")
        e(f"v_lshl_add_u32 v{VT+3}, v{VT+1}, 4, v{VT+3}")
        if epi.get('nmask') is not None:
            e(f"s_lshl_b32 s32, s30, 7")
            e(f"v_lshlrev_b32 v{VT+4}, 3, v{VT+1}")
            e(f"v_add_u32 v{VT+4}, s32, v{VT+4}")
            e(f"v_cmp_gt_u32 vcc, {epi['nmask']}, v{VT+4}")
            e("s_and_saveexec_b64 s[44:45], vcc")
            e(f"s_cbranch_execz {name}_done")
        for i in range(nrow):
            d = ACC + 4 * (i % 8)
            e(f"ds_read_b128 v[{d}:{d+3}], v{VT+2} offset:{i*16*PAD}")
            if epi.get('resid'):
                r = ACC + 32 + 4 * (i % 8)
                e(f"s_mov_b32 s32, {i*16*ldo}")
                e(f"buffer_load_dwordx4 v[{r}:{r+3}], v{VT+3}, s[24:27], s32 offen")
            if i % 8 == 7 or i == nrow - 1:
                i0 = i - (i % 8)
                e("s_waitcnt vmcnt(0) lgkmcnt(0)")
                for ii in range(i0, i + 1):
                    d = ACC + 4 * (ii % 8)
                    if epi.get('resid'):
                        r = ACC + 32 + 4 * (ii % 8)
                        for j in range(4):
                            unpack(k, d + j, VT + 4, VT + 5)
                            unpack(k, r + j, VT + 6, VT + 7)
                            e(f"v_add_f32 v{VT+4}, v{VT+4}, v{VT+6}")
                            e(f"v_add_f32 v{VT+5}, v{VT+5}, v{VT+7}")
                            e(f"v_cvt_pk_bf16_f32 v{d+j}, v{VT+4}, v{VT+5}")
                    e(f"s_mov_b32 s32, {ii*16*ldo}")
                    e(f"buffer_store_dwordx4 v[{d}:{d+3}], v{VT+3}, s[16:19], s32 offen")
    k.label(f"{name}_done")
    lds = 2 * STG
    return kernel_header(name) + k.text() + kernel_footer(name, nv, 48), lds


def build():
    kernels = []

    kernels.append(("ln1_kernel", gen_ln("ln1_kernel", 'ln1'), 512, 256, 0))

    def dec_qkv(k):
        k.e("s_lshr_b32 s31, s2, 9")
        k.e("s_and_b32 s32, s2, 511")
        k.e("s_lshr_b32 s29, s32, 5")
        k.e("s_and_b32 s30, s32, 31")

    def ptr_qkv(k):
        e = k.e
        e(f"s_load_dwordx2 s[4:5], s[0:1], {SL_WS*8}")
        e(f"s_load_dwordx2 s[6:7], s[0:1], {SL_CKV*8}")
        e(f"s_load_dwordx4 s[44:47], s[0:1], {SL_WQ*8}")
        e(f"s_load_dwordx2 s[42:43], s[0:1], {SL_WUV*8}")
        e("s_waitcnt lgkmcnt(0)")
        e("s_cmp_eq_u32 s31, 0")
        e("s_cselect_b32 s6, s4, s6")
        e("s_cselect_b32 s7, s5, s7")
        e("s_cmp_eq_u32 s31, 1")
        e("s_cselect_b32 s44, s46, s44")
        e("s_cselect_b32 s45, s47, s45")
        e("s_cmp_eq_u32 s31, 2")
        e("s_cselect_b32 s44, s42, s44")
        e("s_cselect_b32 s45, s43, s45")
        e("s_lshl_b32 s32, s29, 17")
        e(f"s_sub_u32 s33, 0x{S*DM*2:x}, s32")
        srd_from(k, 8, (6, 7), "s32", "s33")
        e("s_lshl_b32 s32, s30, 8")
        e(f"s_sub_u32 s33, 0x{DM*NH*HD*2:x}, s32")
        srd_from(k, 12, (44, 45), "s32", "s33")
        e("s_lshl_b32 s32, s31, 24")
        e("s_lshl_b32 s33, s29, 20")
        e("s_add_u32 s32, s32, s33")
        e("s_lshl_b32 s33, s30, 8")
        e("s_add_u32 s32, s32, s33")
        e(f"s_add_u32 s32, s32, 0x{WS_Q:x}")
        e(f"s_sub_u32 s33, 0x{WS_Q + 3*S*NH*HD*2:x}, s32")
        srd_from(k, 16, (4, 5), "s32", "s33")

    t, lds = gen_gemm("qkv_kernel", 128, 8, dec_qkv, ptr_qkv, DM * 2, NH * HD * 2,
                      dict(kind='bf16', ldo=NH * HD * 2), 1536)
    kernels.append(("qkv_kernel", t, 1536, 256, lds))

    KCH = NH * HD // KSPLIT

    def dec_op(k):
        k.e("s_lshr_b32 s31, s2, 6")
        k.e("s_and_b32 s32, s2, 63")
        k.e("s_lshr_b32 s29, s32, 2")
        k.e("s_and_b32 s30, s32, 3")

    def ptr_op(k):
        e = k.e
        e(f"s_load_dwordx2 s[4:5], s[0:1], {SL_WS*8}")
        e(f"s_load_dwordx2 s[6:7], s[0:1], {SL_WO*8}")
        e("s_waitcnt lgkmcnt(0)")
        e("s_lshl_b32 s32, s29, 20")
        e(f"s_mul_i32 s33, s31, {KCH*2}")
        e("s_add_u32 s32, s32, s33")
        e(f"s_add_u32 s32, s32, 0x{WS_CTX:x}")
        e(f"s_sub_u32 s33, 0x{WS_CTX + S*NH*HD*2:x}, s32")
        srd_from(k, 8, (4, 5), "s32", "s33")
        e(f"s_mul_i32 s32, s31, {KCH*DM*2}")
        e("s_lshl_b32 s33, s30, 8")
        e("s_add_u32 s32, s32, s33")
        e(f"s_sub_u32 s33, 0x{NH*HD*DM*2:x}, s32")
        srd_from(k, 12, (6, 7), "s32", "s33")
        e(f"s_lshl_b32 s32, s31, 22")
        e("s_lshl_b32 s33, s29, 18")
        e("s_add_u32 s32, s32, s33")
        e("s_lshl_b32 s33, s30, 9")
        e("s_add_u32 s32, s32, s33")
        e(f"s_add_u32 s32, s32, 0x{WS_PART:x}")
        e(f"s_sub_u32 s33, 0x{WS_PART + KSPLIT*S*DM*4:x}, s32")
        srd_from(k, 16, (4, 5), "s32", "s33")

    t, lds = gen_gemm("oproj_kernel", 128, KCH // 64, dec_op, ptr_op, NH * HD * 2, DM * 2,
                      dict(kind='f32', ldo=DM * 4), 16 * 4 * KSPLIT)
    kernels.append(("oproj_kernel", t, 16 * 4 * KSPLIT, 256, lds))

    kernels.append(("ln2_kernel", gen_ln("ln2_kernel", 'ln2'), 512, 256, 0))

    def dec_f1(k):
        k.e("s_mov_b32 s31, 0")
        k.e("s_mul_hi_u32 s30, s2, 0x10000000")
        k.e("s_lshr_b32 s30, s2, 4")
        k.e("s_and_b32 s29, s2, 15")

    def ptr_f1(k):
        e = k.e
        e(f"s_load_dwordx2 s[4:5], s[0:1], {SL_WS*8}")
        e(f"s_load_dwordx2 s[6:7], s[0:1], {SL_W1*8}")
        e(f"s_load_dwordx2 s[42:43], s[0:1], {SL_B1*8}")
        e("s_waitcnt lgkmcnt(0)")
        e("s_lshl_b32 s32, s29, 17")
        e(f"s_add_u32 s32, s32, 0x{WS_HN:x}")
        e(f"s_sub_u32 s33, 0x{WS_HN + S*DM*2:x}, s32")
        srd_from(k, 8, (4, 5), "s32", "s33")
        e("s_lshl_b32 s32, s30, 8")
        e(f"s_sub_u32 s33, 0x{DM*FF*2:x}, s32")
        srd_from(k, 12, (6, 7), "s32", "s33")
        e(f"s_mul_i32 s32, s29, {128*FF*2}")
        e("s_lshl_b32 s33, s30, 8")
        e("s_add_u32 s32, s32, s33")
        e(f"s_add_u32 s32, s32, 0x{WS_G:x}")
        e(f"s_sub_u32 s33, 0x{WS_G + S*FF*2:x}, s32")
        srd_from(k, 16, (4, 5), "s32", "s33")
        e("s_lshl_b32 s32, s30, 8")
        e(f"s_sub_u32 s33, 0x{FF*2:x}, s32")
        srd_from(k, 20, (42, 43), "s32", "s33")

    t, lds = gen_gemm("ffn1_kernel", 128, 8, dec_f1, ptr_f1, DM * 2, FF * 2,
                      dict(kind='bf16', ldo=FF * 2, bias=True, gelu=True, nmask=FF), 16 * 11)
    kernels.append(("ffn1_kernel", t, 16 * 11, 256, lds))

    def dec_f2(k):
        k.e("s_mov_b32 s31, 0")
        k.e("s_lshr_b32 s29, s2, 2")
        k.e("s_and_b32 s30, s2, 3")

    def ptr_f2(k):
        e = k.e
        e(f"s_load_dwordx2 s[4:5], s[0:1], {SL_WS*8}")
        e(f"s_load_dwordx2 s[6:7], s[0:1], {SL_W2*8}")
        e(f"s_load_dwordx2 s[42:43], s[0:1], {SL_B2*8}")
        e(f"s_load_dwordx2 s[44:45], s[0:1], {SL_OUT*8}")
        e("s_waitcnt lgkmcnt(0)")
        e(f"s_mul_i32 s32, s29, {64*FF*2}")
        e(f"s_add_u32 s32, s32, 0x{WS_G:x}")
        e(f"s_sub_u32 s33, 0x{WS_G + S*FF*2:x}, s32")
        srd_from(k, 8, (4, 5), "s32", "s33")
        e("s_lshl_b32 s32, s30, 8")
        e(f"s_sub_u32 s33, 0x{FF*DM*2:x}, s32")
        srd_from(k, 12, (6, 7), "s32", "s33")
        e("s_lshl_b32 s32, s29, 16")
        e("s_lshl_b32 s33, s30, 8")
        e("s_add_u32 s32, s32, s33")
        e(f"s_sub_u32 s33, 0x{S*DM*2:x}, s32")
        srd_from(k, 16, (44, 45), "s32", "s33")
        e(f"s_add_u32 s32, s32, 0x{WS_H:x}")
        e(f"s_sub_u32 s33, 0x{WS_H + S*DM*2:x}, s32")
        srd_from(k, 24, (4, 5), "s32", "s33")
        e("s_lshl_b32 s32, s30, 8")
        e(f"s_sub_u32 s33, 0x{DM*2:x}, s32")
        srd_from(k, 20, (42, 43), "s32", "s33")

    t, lds = gen_gemm("ffn2_kernel", 64, 22, dec_f2, ptr_f2, FF * 2, DM * 2,
                      dict(kind='bf16', ldo=DM * 2, bias=True, resid=True), 32 * 4)
    kernels.append(("ffn2_kernel", t, 32 * 4, 256, lds))
    return kernels


def emit(kernels, order):
    hdr = open("cdna_kernels/" + KNAME + ".s.ref").read().split("; Override launch")[0]
    out = hdr
    byname = {k[0]: k for k in kernels}
    for n in order:
        _, _, g, b, lds = byname[n]
        out += f"; @launch kernel={n} grid=({g},1,1) block=({b},1,1) lds={lds}\n"
    out += '.amdgcn_target "amdgcn-amd-amdhsa--gfx950"\n.text\n'
    for n in dict.fromkeys(order):
        out += byname[n][1]
    return out


if __name__ == "__main__":
    ks = build()
    order = sys.argv[1:] or [k[0] for k in ks]
    open("cdna_kernels/" + KNAME + ".s", "w").write(emit(ks, order))
```

```python
from gen import *


def gen_attn(name="attn_kernel"):
    k = Kern(name)
    e = k.e
    O = 0
    SA = 64
    QF = 96
    P = 128
    KF = 144
    VF = 160
    AK = 176
    AV = 184
    DK = 188
    DV = 192
    VM = 196
    VLs = 197
    T = 198
    L = 216
    QO = 217
    QR = 218
    nv = 220
    RS = 8192

    e("s_cmp_ge_u32 s2, 256")
    e(f"s_cbranch_scc1 {name}_done")
    e(f"s_load_dwordx2 s[4:5], s[0:1], {SL_WS*8}")
    e(f"v_and_b32 v{L}, 63, v0")
    e(f"v_lshrrev_b32 v{T}, 6, v0")
    e("s_nop 0")
    e(f"v_readfirstlane_b32 s28, v{T}")
    e("s_and_b32 s29, s28, 3")
    e("s_lshr_b32 s30, s28, 2")
    e("s_and_b32 s31, s2, 7")
    e("s_lshl_b32 s31, s31, 2")
    e("s_lshr_b32 s32, s2, 6")
    e("s_add_u32 s31, s31, s32")
    e("s_bfe_u32 s32, s2, 0x30003")
    e("s_waitcnt lgkmcnt(0)")
    e("s_lshl_b32 s33, s31, 8")
    for (dst, off) in ((8, WS_Q), (12, WS_K), (16, WS_V), (20, WS_CTX)):
        e(f"s_add_u32 s34, s33, 0x{off:x}")
        e(f"s_sub_u32 s35, 0x{off + S*NH*HD*2:x}, s34")
        srd_from(k, dst, (4, 5), "s34", "s35")
    e(f"v_lshrrev_b32 v{T}, 4, v{L}")
    e(f"v_and_b32 v{T+1}, 15, v{L}")
    for j in range(4):
        e("s_lshl_b32 s34, s29, 4")
        e(f"s_add_u32 s34, s34, {4*j}")
        e(f"v_add_u32 v{T+2}, s34, v{T}")
        e(f"v_and_b32 v{T+3}, 15, v{T+2}")
        e(f"v_xor_b32 v{T+3}, v{T+3}, v{T+1}")
        e(f"v_lshlrev_b32 v{T+3}, 4, v{T+3}")
        e(f"v_lshl_add_u32 v{DK+j}, v{T+2}, 13, v{T+3}")
        e(f"v_lshlrev_b32 v{T+3}, 2, v{T}")
        e(f"v_xor_b32 v{T+3}, v{T+3}, v{T+1}")
        e(f"v_lshlrev_b32 v{T+3}, 4, v{T+3}")
        e(f"v_lshl_add_u32 v{DV+j}, v{T+2}, 13, v{T+3}")
    e(f"v_and_b32 v{T}, 31, v{L}")
    e(f"v_lshrrev_b32 v{T+1}, 5, v{L}")
    e(f"v_and_b32 v{T+2}, 15, v{T}")
    e(f"v_xor_b32 v{T+2}, v{T+2}, v{T+1}")
    e(f"v_lshlrev_b32 v{T+2}, 4, v{T+2}")
    e(f"v_lshl_add_u32 v{AK}, v{T}, 8, v{T+2}")
    e("s_lshl_b32 s34, s30, 16")
    e(f"v_add_u32 v{AK}, s34, v{AK}")
    for ks in range(1, 8):
        e(f"v_xor_b32 v{AK+ks}, {32*ks}, v{AK}")
    e(f"v_lshrrev_b32 v{T}, 5, v{L}")
    e(f"v_lshlrev_b32 v{T}, 2, v{T}")
    e(f"v_bfe_u32 v{T+1}, v{L}, 2, 2")
    e(f"v_add_u32 v{T}, v{T}, v{T+1}")
    e(f"v_lshlrev_b32 v{T}, 8, v{T}")
    e(f"v_lshl_add_u32 v{T}, v{T+1}, 6, v{T}")
    e(f"v_bfe_u32 v{T+2}, v{L}, 4, 1")
    e(f"v_lshl_add_u32 v{T}, v{T+2}, 5, v{T}")
    e(f"v_and_b32 v{T+2}, 3, v{L}")
    e(f"v_lshl_add_u32 v{T}, v{T+2}, 3, v{T}")
    e("s_add_u32 s34, s34, 16384")
    e(f"v_add_u32 v{AV}, s34, v{T}")
    for b in range(1, 4):
        e(f"v_xor_b32 v{AV+b}, {64*b}, v{AV}")
    e("s_lshl_b32 s37, s30, 16")
    e("s_lshl_b32 s34, s29, 12")
    e("s_add_u32 s37, s37, s34")
    e("s_mov_b32 s40, 0")
    e("s_mov_b32 s44, 0x3e0293ee")
    e("s_sub_u32 s33, 15, s32")

    def dma(stage_reg_comment=""):
        for j in range(4):
            e(f"s_add_u32 m0, s37, {j*1024}")
            e("s_nop 0")
            e(f"buffer_load_dwordx4 v{DK+j}, s[12:15], s36 offen lds")
        for j in range(4):
            e(f"s_add_u32 m0, s37, {16384 + j*1024}")
            e("s_nop 0")
            e(f"buffer_load_dwordx4 v{DV+j}, s[16:19], s36 offen lds")

    k.label(f"{name}_block")
    e("s_lshl_b32 s34, s33, 7")
    e("s_lshl_b32 s35, s29, 5")
    e("s_add_u32 s34, s34, s35")
    e(f"v_and_b32 v{T}, 31, v{L}")
    e(f"v_add_u32 v{T}, s34, v{T}")
    e(f"v_lshlrev_b32 v{QO}, 13, v{T}")
    e(f"v_lshrrev_b32 v{T+1}, 5, v{L}")
    e(f"v_lshl_add_u32 v{QO}, v{T+1}, 4, v{QO}")
    e(f"v_lshlrev_b32 v{T+1}, 2, v{T+1}")
    e(f"v_sub_u32 v{QR}, v{T}, v{T+1}")
    for ks in range(8):
        e(f"buffer_load_dwordx4 v[{QF+4*ks}:{QF+4*ks+3}], v{QO}, s[8:11], 0 offen offset:{32*ks}")
    e("s_lshl_b32 s36, s30, 19")
    dma()
    e("s_add_u32 s36, s36, 0x100000")
    e("s_xor_b32 s37, s37, 0x8000")
    for i in range(64):
        e(f"v_mov_b32 v{O+i}, 0")
    e(f"v_mov_b32 v{VM}, 0xf149f2ca")
    e(f"v_mov_b32 v{VLs}, 0")
    e("s_mov_b32 s35, s33")

    def body(masked):
        e("s_waitcnt vmcnt(0)")
        e("s_barrier")
        if not masked:
            dma()
            e("s_add_u32 s36, s36, 0x100000")
            e("s_xor_b32 s37, s37, 0x8000")
        seq = [(u, ks) for u in range(2) for ks in range(8)]
        def kread(i):
            u, ks = seq[i]
            b = KF + 4 * (i % 4)
            e(f"ds_read_b128 v[{b}:{b+3}], v{AK+ks} offset:{u*8192}")
        for i in range(4):
            kread(i)
        for i in range(16):
            u, ks = seq[i]
            e(f"s_waitcnt lgkmcnt({min(3, 15-i)})")
            b = KF + 4 * (i % 4)
            s = SA + 16 * u
            c = "0" if ks == 0 else f"v[{s}:{s+15}]"
            e(f"v_mfma_f32_32x32x16_bf16 v[{s}:{s+15}], v[{b}:{b+3}], v[{QF+4*ks}:{QF+4*ks+3}], {c}")
            if i + 4 < 16:
                kread(i + 4)
        e("s_nop 15")
        if masked:
            e("s_lshl_b32 s41, s33, 1")
            e("s_add_u32 s41, s41, s30")
            e("s_lshl_b32 s41, s41, 6")
            e(f"v_subrev_u32 v{T}, s41, v{QR}")
            e(f"v_mov_b32 v{T+1}, 0xff800000")
            for u in range(2):
                for r in range(16):
                    kl = 32 * u + (r % 4) + 8 * (r // 4)
                    e(f"v_cmp_le_i32 vcc, {kl}, v{T}")
                    e("s_nop 1")
                    e(f"v_cndmask_b32 v{SA+16*u+r}, v{T+1}, v{SA+16*u+r}, vcc")
        e(f"v_max3_f32 v{T}, v{SA}, v{SA+1}, v{SA+2}")
        for i in range(3, 31, 2):
            e(f"v_max3_f32 v{T}, v{T}, v{SA+i}, v{SA+i+1}")
        e(f"v_max_f32 v{T}, v{T}, v{SA+31}")
        e(f"v_mov_b32 v{T+1}, v{T}")
        e("s_nop 1")
        e(f"v_permlane32_swap_b32 v{T}, v{T+1}")
        e(f"v_max_f32 v{T}, v{T}, v{T+1}")
        e(f"v_mul_f32 v{T}, s44, v{T}")
        e(f"v_max_f32 v{T}, v{T}, v{VM}")
        e(f"v_sub_f32 v{T+1}, v{VM}, v{T}")
        e(f"v_exp_f32 v{T+1}, v{T+1}")
        e(f"v_mov_b32 v{VM}, v{T}")
        for i in range(32):
            e(f"v_fma_f32 v{SA+i}, v{SA+i}, s44, -v{VM}")
        for i in range(32):
            e(f"v_exp_f32 v{SA+i}, v{SA+i}")
        for i in range(64):
            e(f"v_mul_f32 v{O+i}, v{O+i}, v{T+1}")
        e(f"v_add_f32 v{T+2}, v{SA}, v{SA+1}")
        for i in range(2, 32):
            e(f"v_add_f32 v{T+2}, v{T+2}, v{SA+i}")
        e(f"v_fma_f32 v{VLs}, v{VLs}, v{T+1}, v{T+2}")
        for i in range(16):
            e(f"v_cvt_pk_bf16_f32 v{P+i}, v{SA+2*i}, v{SA+2*i+1}")
        seq2 = [(j, b) for j in range(4) for b in range(4)]
        def vread(i):
            j, b = seq2[i]
            u, jj = j >> 1, j & 1
            f = VF + 4 * (i % 4)
            key0 = 32 * u + 16 * jj
            e(f"ds_read_b64_tr_b16 v[{f}:{f+1}], v{AV+b} offset:{key0*256}")
            e(f"ds_read_b64_tr_b16 v[{f+2}:{f+3}], v{AV+b} offset:{(key0+8)*256}")
        for i in range(4):
            vread(i)
        for i in range(16):
            j, b = seq2[i]
            e(f"s_waitcnt lgkmcnt({2*min(3, 15-i)})")
            f = VF + 4 * (i % 4)
            o = O + 16 * b
            e(f"v_mfma_f32_32x32x16_bf16 v[{o}:{o+15}], v[{f}:{f+3}], v[{P+4*j}:{P+4*j+3}], v[{o}:{o+15}]")
            if i + 4 < 16:
                vread(i + 4)
        for i in range(8):
            e(f"v_xor_b32 v{AK+i}, 0x8000, v{AK+i}")
        for i in range(4):
            e(f"v_xor_b32 v{AV+i}, 0x8000, v{AV+i}")

    e("s_cmp_eq_u32 s35, 0")
    e(f"s_cbranch_scc1 {name}_lastu")
    k.label(f"{name}_loop")
    body(False)
    e("s_sub_u32 s35, s35, 1")
    e("s_cmp_lg_u32 s35, 0")
    e(f"s_cbranch_scc1 {name}_loop")
    k.label(f"{name}_lastu")
    body(True)
    e("s_nop 15")
    e("s_barrier")
    e("s_cmp_eq_u32 s30, 0")
    e(f"s_cbranch_scc1 {name}_mrg0")
    e(f"v_lshlrev_b32 v{T}, 4, v{L}")
    e(f"s_mul_i32 s34, s29, 17408")
    e(f"v_add_u32 v{T}, s34, v{T}")
    for i in range(16):
        e(f"ds_write_b128 v{T}, v[{O+4*i}:{O+4*i+3}] offset:{i*1024}")
    e(f"v_lshlrev_b32 v{T+1}, 3, v{L}")
    e(f"v_add_u32 v{T+1}, s34, v{T+1}")
    e(f"ds_write_b64 v{T+1}, v[{VM}:{VLs}] offset:16384")
    e("s_waitcnt lgkmcnt(0)")
    e("s_barrier")
    e(f"s_branch {name}_next")
    k.label(f"{name}_mrg0")
    e("s_barrier")
    e(f"v_lshlrev_b32 v{T}, 4, v{L}")
    e(f"s_mul_i32 s34, s29, 17408")
    e(f"v_add_u32 v{T}, s34, v{T}")
    e(f"v_lshlrev_b32 v{T+1}, 3, v{L}")
    e(f"v_add_u32 v{T+1}, s34, v{T+1}")
    e(f"ds_read_b64 v[{T+2}:{T+3}], v{T+1} offset:16384")
    for i in range(16):
        e(f"ds_read_b128 v[{SA+4*(i%8)}:{SA+4*(i%8)+3}], v{T} offset:{i*1024}")
        if i == 7:
            e("s_waitcnt lgkmcnt(0)")
            e(f"v_max_f32 v{T+4}, v{VM}, v{T+2}")
            e(f"v_sub_f32 v{T+5}, v{VM}, v{T+4}")
            e(f"v_sub_f32 v{T+6}, v{T+2}, v{T+4}")
            e(f"v_exp_f32 v{T+5}, v{T+5}")
            e(f"v_exp_f32 v{T+6}, v{T+6}")
            e("s_nop 0")
            e(f"v_mul_f32 v{VLs}, v{VLs}, v{T+5}")
            e(f"v_fma_f32 v{VLs}, v{T+3}, v{T+6}, v{VLs}")
            for r in range(32):
                e(f"v_mul_f32 v{O+r}, v{O+r}, v{T+5}")
                e(f"v_fma_f32 v{O+r}, v{SA+r}, v{T+6}, v{O+r}")
    e("s_waitcnt lgkmcnt(0)")
    for r in range(32):
        e(f"v_mul_f32 v{O+32+r}, v{O+32+r}, v{T+5}")
        e(f"v_fma_f32 v{O+32+r}, v{SA+r}, v{T+6}, v{O+32+r}")
    e(f"v_mov_b32 v{T+2}, v{VLs}")
    e(f"v_mov_b32 v{T+3}, v{VLs}")
    e("s_nop 1")
    e(f"v_permlane32_swap_b32 v{T+2}, v{T+3}")
    e(f"v_add_f32 v{T+2}, v{T+2}, v{T+3}")
    e(f"v_rcp_f32 v{T+2}, v{T+2}")
    e("s_nop 0")
    for i in range(64):
        e(f"v_mul_f32 v{O+i}, v{O+i}, v{T+2}")
    e(f"v_lshrrev_b32 v{T+3}, 5, v{L}")
    e(f"v_lshlrev_b32 v{T+3}, 3, v{T+3}")
    e(f"v_sub_u32 v{T+3}, v{QO}, v{T+3}")
    for b in range(4):
        for q in range(4):
            r = O + 16 * b + 4 * q
            e(f"v_cvt_pk_bf16_f32 v{r}, v{r}, v{r+1}")
            e(f"v_cvt_pk_bf16_f32 v{r+1}, v{r+2}, v{r+3}")
            e(f"buffer_store_dwordx2 v[{r}:{r+1}], v{T+3}, s[20:23], 0 offen offset:{(32*b+8*q)*2}")
    k.label(f"{name}_next")
    e("s_waitcnt lgkmcnt(0)")
    e("s_barrier")
    e("s_and_b32 s34, s33, 1")
    e("s_cmp_eq_u32 s34, 1")
    e(f"s_cbranch_scc1 {name}_noflip")
    e("s_xor_b32 s37, s37, 0x8000")
    for i in range(8):
        e(f"v_xor_b32 v{AK+i}, 0x8000, v{AK+i}")
    for i in range(4):
        e(f"v_xor_b32 v{AV+i}, 0x8000, v{AV+i}")
    k.label(f"{name}_noflip")
    e("s_add_u32 s40, s40, 1")
    e("s_mov_b32 s33, s32")
    e("s_cmp_eq_u32 s40, 1")
    e(f"s_cbranch_scc1 {name}_block")
    k.label(f"{name}_done")
    return kernel_header(name) + k.text() + kernel_footer(name, nv, 48)


if __name__ == "__main__":
    ks = build()
    ks.append(("attn_kernel", gen_attn(), 256, 512, 131072))
    order = ["ln1_kernel", "qkv_kernel", "attn_kernel", "oproj_kernel", "ln2_kernel", "ffn1_kernel", "ffn2_kernel"]
    open("cdna_kernels/" + KNAME + ".s", "w").write(emit(ks, order))
```

```python
from gen import *


def gen_attn(name="attn_kernel", prof=False):
    k = Kern(name)
    e = k.e
    def stamp(i):
        if not prof:
            return
        e("s_memtime s[60:61]")
        e("s_waitcnt lgkmcnt(0)")
        e(f"s_sub_u32 s62, s60, s63")
        e(f"s_add_u32 s{50+i}, s{50+i}, s62")
        e("s_mov_b32 s63, s60")
    O = 0
    SA = 64
    QF = 96
    P = 128
    KF = 144
    VF = 160
    AK = 176
    AV = 184
    DK = 188
    DV = 192
    VM = 196
    VLs = 197
    T = 198
    L = 216
    QO = 217
    QR = 218
    nv = 220
    RS = 8192

    e("s_cmp_ge_u32 s2, 256")
    e(f"s_cbranch_scc1 {name}_done")
    e(f"s_load_dwordx2 s[4:5], s[0:1], {SL_WS*8}")
    e(f"v_and_b32 v{L}, 63, v0")
    e(f"v_lshrrev_b32 v{T}, 6, v0")
    e("s_nop 0")
    e(f"v_readfirstlane_b32 s28, v{T}")
    e("s_and_b32 s29, s28, 3")
    e("s_lshr_b32 s30, s28, 2")
    e("s_and_b32 s31, s2, 7")
    e("s_lshl_b32 s31, s31, 2")
    e("s_lshr_b32 s32, s2, 6")
    e("s_add_u32 s31, s31, s32")
    e("s_bfe_u32 s32, s2, 0x30003")
    e("s_waitcnt lgkmcnt(0)")
    e("s_lshl_b32 s33, s31, 8")
    for (dst, off) in ((8, WS_Q), (12, WS_K), (16, WS_V), (20, WS_CTX)):
        e(f"s_add_u32 s34, s33, 0x{off:x}")
        e(f"s_sub_u32 s35, 0x{off + S*NH*HD*2:x}, s34")
        srd_from(k, dst, (4, 5), "s34", "s35")
    e(f"v_lshrrev_b32 v{T}, 4, v{L}")
    e(f"v_and_b32 v{T+1}, 15, v{L}")
    for j in range(4):
        e("s_lshl_b32 s34, s29, 4")
        e(f"s_add_u32 s34, s34, {4*j}")
        e(f"v_add_u32 v{T+2}, s34, v{T}")
        e(f"v_and_b32 v{T+3}, 15, v{T+2}")
        e(f"v_xor_b32 v{T+3}, v{T+3}, v{T+1}")
        e(f"v_lshlrev_b32 v{T+3}, 4, v{T+3}")
        e(f"v_lshl_add_u32 v{DK+j}, v{T+2}, 13, v{T+3}")
        e(f"v_lshlrev_b32 v{T+3}, 2, v{T}")
        e(f"v_xor_b32 v{T+3}, v{T+3}, v{T+1}")
        e(f"v_lshlrev_b32 v{T+3}, 4, v{T+3}")
        e(f"v_lshl_add_u32 v{DV+j}, v{T+2}, 13, v{T+3}")
    e(f"v_and_b32 v{T}, 31, v{L}")
    e(f"v_lshrrev_b32 v{T+1}, 5, v{L}")
    e(f"v_and_b32 v{T+2}, 15, v{T}")
    e(f"v_xor_b32 v{T+2}, v{T+2}, v{T+1}")
    e(f"v_lshlrev_b32 v{T+2}, 4, v{T+2}")
    e(f"v_lshl_add_u32 v{AK}, v{T}, 8, v{T+2}")
    e("s_lshl_b32 s34, s30, 16")
    e(f"v_add_u32 v{AK}, s34, v{AK}")
    for ks in range(1, 8):
        e(f"v_xor_b32 v{AK+ks}, {32*ks}, v{AK}")
    e(f"v_lshrrev_b32 v{T}, 5, v{L}")
    e(f"v_lshlrev_b32 v{T}, 2, v{T}")
    e(f"v_bfe_u32 v{T+1}, v{L}, 2, 2")
    e(f"v_add_u32 v{T}, v{T}, v{T+1}")
    e(f"v_lshlrev_b32 v{T}, 8, v{T}")
    e(f"v_lshl_add_u32 v{T}, v{T+1}, 6, v{T}")
    e(f"v_bfe_u32 v{T+2}, v{L}, 4, 1")
    e(f"v_lshl_add_u32 v{T}, v{T+2}, 5, v{T}")
    e(f"v_and_b32 v{T+2}, 3, v{L}")
    e(f"v_lshl_add_u32 v{T}, v{T+2}, 3, v{T}")
    e("s_add_u32 s34, s34, 16384")
    e(f"v_add_u32 v{AV}, s34, v{T}")
    for b in range(1, 4):
        e(f"v_xor_b32 v{AV+b}, {64*b}, v{AV}")
    e("s_lshl_b32 s37, s30, 16")
    e("s_lshl_b32 s34, s29, 12")
    e("s_add_u32 s37, s37, s34")
    e("s_mov_b32 s40, 0")
    if prof:
        for i in range(8):
            e(f"s_mov_b32 s{50+i}, 0")
        e("s_memtime s[60:61]")
        e("s_waitcnt lgkmcnt(0)")
        e("s_mov_b32 s63, s60")
    e("s_mov_b32 s44, 0x3e0293ee")
    e("s_sub_u32 s33, 15, s32")

    def dma(stage_reg_comment=""):
        for j in range(4):
            e(f"s_add_u32 m0, s37, {j*1024}")
            e("s_nop 0")
            e(f"buffer_load_dwordx4 v{DK+j}, s[12:15], s36 offen lds")
        for j in range(4):
            e(f"s_add_u32 m0, s37, {16384 + j*1024}")
            e("s_nop 0")
            e(f"buffer_load_dwordx4 v{DV+j}, s[16:19], s36 offen lds")

    k.label(f"{name}_block")
    e("s_lshl_b32 s34, s33, 7")
    e("s_lshl_b32 s35, s29, 5")
    e("s_add_u32 s34, s34, s35")
    e(f"v_and_b32 v{T}, 31, v{L}")
    e(f"v_add_u32 v{T}, s34, v{T}")
    e(f"v_lshlrev_b32 v{QO}, 13, v{T}")
    e(f"v_lshrrev_b32 v{T+1}, 5, v{L}")
    e(f"v_lshl_add_u32 v{QO}, v{T+1}, 4, v{QO}")
    e(f"v_lshlrev_b32 v{T+1}, 2, v{T+1}")
    e(f"v_sub_u32 v{QR}, v{T}, v{T+1}")
    for ks in range(8):
        e(f"buffer_load_dwordx4 v[{QF+4*ks}:{QF+4*ks+3}], v{QO}, s[8:11], 0 offen offset:{32*ks}")
    e("s_lshl_b32 s36, s30, 19")
    for j in range(4):
        e(f"s_add_u32 m0, s37, {j*1024}")
        e("s_nop 0")
        e(f"buffer_load_dwordx4 v{DK+j}, s[12:15], s36 offen lds")
    e("s_add_u32 s36, s36, 0x100000")
    e("s_xor_b32 s37, s37, 0x8000")
    for i in range(64):
        e(f"v_mov_b32 v{O+i}, 0")
    e(f"v_mov_b32 v{VM}, 0xf149f2ca")
    e(f"v_mov_b32 v{VLs}, 0")
    e("s_mov_b32 s35, s33")

    def pv():
        seq2 = [(j, b) for j in range(4) for b in range(4)]
        def vread(i):
            j, b = seq2[i]
            u, jj = j >> 1, j & 1
            f = VF + 4 * (i % 4)
            key0 = 32 * u + 16 * jj
            e(f"ds_read_b64_tr_b16 v[{f}:{f+1}], v{AV+b} offset:{key0*256}")
            e(f"ds_read_b64_tr_b16 v[{f+2}:{f+3}], v{AV+b} offset:{(key0+8)*256}")
        for i in range(4):
            vread(i)
        for i in range(16):
            j, b = seq2[i]
            e(f"s_waitcnt lgkmcnt({2*min(3, 15-i)})")
            f = VF + 4 * (i % 4)
            o = O + 16 * b
            e(f"v_mfma_f32_32x32x16_bf16 v[{o}:{o+15}], v[{f}:{f+3}], v[{P+4*j}:{P+4*j+3}], v[{o}:{o+15}]")
            if i + 4 < 16:
                vread(i + 4)
        for i in range(4):
            e(f"v_xor_b32 v{AV+i}, 0x8000, v{AV+i}")

    bcount = [0]

    def body(masked):
        bcount[0] += 1
        tag = f"{name}_b{bcount[0]}"
        stamp(5)
        e("s_waitcnt vmcnt(0)")
        e("s_barrier")
        stamp(0)
        seq = [(u, ks) for u in range(2) for ks in range(8)]
        def kread(i):
            u, ks = seq[i]
            b = KF + 4 * (i % 4)
            e(f"ds_read_b128 v[{b}:{b+3}], v{AK+ks} offset:{u*8192}")
        for i in range(4):
            kread(i)
        for i in range(16):
            u, ks = seq[i]
            e(f"s_waitcnt lgkmcnt({min(3, 15-i)})")
            b = KF + 4 * (i % 4)
            sreg = SA + 16 * u
            c = "0" if ks == 0 else f"v[{sreg}:{sreg+15}]"
            e(f"v_mfma_f32_32x32x16_bf16 v[{sreg}:{sreg+15}], v[{b}:{b+3}], v[{QF+4*ks}:{QF+4*ks+3}], {c}")
            if i + 4 < 16:
                kread(i + 4)
            if i == 0:
                e("s_xor_b32 s46, s37, 0x8000")
                e("s_sub_u32 s47, s36, 0x100000")
            if i % 2 == 1:
                j = i // 2
                if j < 4:
                    if not masked:
                        e(f"s_add_u32 m0, s37, {j*1024}")
                        e("s_nop 0")
                        e(f"buffer_load_dwordx4 v{DK+j}, s[12:15], s36 offen lds")
                else:
                    e(f"s_add_u32 m0, s46, {16384 + (j-4)*1024}")
                    e("s_nop 0")
                    e(f"buffer_load_dwordx4 v{DV+j-4}, s[16:19], s47 offen lds")
        if not masked:
            e("s_add_u32 s36, s36, 0x100000")
            e("s_xor_b32 s37, s37, 0x8000")
        for i in range(8):
            e(f"v_xor_b32 v{AK+i}, 0x8000, v{AK+i}")
        stamp(1)
        e("s_cmp_eq_u32 s45, 0")
        e(f"s_cbranch_scc1 {tag}_nopv")
        pv()
        k.label(f"{tag}_nopv")
        e("s_mov_b32 s45, 1")
        stamp(2)
        e("s_barrier")
        stamp(3)
        if masked:
            e("s_lshl_b32 s41, s33, 1")
            e("s_add_u32 s41, s41, s30")
            e("s_lshl_b32 s41, s41, 6")
            e(f"v_subrev_u32 v{T}, s41, v{QR}")
            e(f"v_mov_b32 v{T+1}, 0xff800000")
            for u in range(2):
                for r in range(16):
                    kl = 32 * u + (r % 4) + 8 * (r // 4)
                    e(f"v_cmp_le_i32 vcc, {kl}, v{T}")
                    e("s_nop 1")
                    e(f"v_cndmask_b32 v{SA+16*u+r}, v{T+1}, v{SA+16*u+r}, vcc")
        e(f"v_max3_f32 v{T}, v{SA}, v{SA+1}, v{SA+2}")
        for i in range(3, 31, 2):
            e(f"v_max3_f32 v{T}, v{T}, v{SA+i}, v{SA+i+1}")
        e(f"v_max_f32 v{T}, v{T}, v{SA+31}")
        e(f"v_mov_b32 v{T+1}, v{T}")
        e("s_nop 1")
        e(f"v_permlane32_swap_b32 v{T}, v{T+1}")
        e(f"v_max_f32 v{T}, v{T}, v{T+1}")
        e(f"v_mul_f32 v{T}, s44, v{T}")
        e(f"v_max_f32 v{T}, v{T}, v{VM}")
        e(f"v_sub_f32 v{T+1}, v{VM}, v{T}")
        e(f"v_exp_f32 v{T+1}, v{T+1}")
        e(f"v_mov_b32 v{VM}, v{T}")
        e(f"v_mov_b32 v{T+4}, v{T}")
        e(f"v_mov_b32 v{T+5}, v{T}")
        e(f"v_mov_b32 v{T+6}, s44")
        e(f"v_mov_b32 v{T+7}, s44")
        for i in range(0, 32, 2):
            e(f"v_pk_fma_f32 v[{SA+i}:{SA+i+1}], v[{SA+i}:{SA+i+1}], v[{T+6}:{T+7}], v[{T+4}:{T+5}] neg_lo:[0,0,1] neg_hi:[0,0,1]")
        e(f"v_mov_b32 v{T+8}, v{T+1}")
        e(f"v_mov_b32 v{T+9}, v{T+1}")
        for i in range(32):
            e(f"v_exp_f32 v{SA+i}, v{SA+i}")
            if i % 2 == 1:
                e(f"v_pk_mul_f32 v[{O+i-1}:{O+i}], v[{O+i-1}:{O+i}], v[{T+8}:{T+9}]")
                e(f"v_pk_mul_f32 v[{O+32+i-1}:{O+32+i}], v[{O+32+i-1}:{O+32+i}], v[{T+8}:{T+9}]")
        e(f"v_pk_add_f32 v[{T+2}:{T+3}], v[{SA}:{SA+1}], v[{SA+2}:{SA+3}]")
        for i in range(4, 32, 2):
            e(f"v_pk_add_f32 v[{T+2}:{T+3}], v[{T+2}:{T+3}], v[{SA+i}:{SA+i+1}]")
        e(f"v_add_f32 v{T+2}, v{T+2}, v{T+3}")
        e(f"v_fma_f32 v{VLs}, v{VLs}, v{T+1}, v{T+2}")
        for i in range(16):
            e(f"v_cvt_pk_bf16_f32 v{P+i}, v{SA+2*i}, v{SA+2*i+1}")
        stamp(4)

    e("s_mov_b32 s45, 0")
    e("s_cmp_eq_u32 s30, 0")
    e(f"s_cbranch_scc1 {name}_nostag")
    e("s_barrier")
    k.label(f"{name}_nostag")
    e("s_cmp_eq_u32 s35, 0")
    e(f"s_cbranch_scc1 {name}_lastu")
    k.label(f"{name}_loop")
    body(False)
    e("s_sub_u32 s35, s35, 1")
    e("s_cmp_lg_u32 s35, 0")
    e(f"s_cbranch_scc1 {name}_loop")
    k.label(f"{name}_lastu")
    body(True)
    e("s_waitcnt vmcnt(0)")
    e("s_barrier")
    pv()
    e("s_cmp_lg_u32 s30, 0")
    e(f"s_cbranch_scc1 {name}_nostag2")
    e("s_barrier")
    k.label(f"{name}_nostag2")
    e("s_nop 15")
    e("s_barrier")
    e("s_cmp_eq_u32 s30, 0")
    e(f"s_cbranch_scc1 {name}_mrg0")
    e(f"v_lshlrev_b32 v{T}, 4, v{L}")
    e(f"s_mul_i32 s34, s29, 17408")
    e(f"v_add_u32 v{T}, s34, v{T}")
    for i in range(16):
        e(f"ds_write_b128 v{T}, v[{O+4*i}:{O+4*i+3}] offset:{i*1024}")
    e(f"v_lshlrev_b32 v{T+1}, 3, v{L}")
    e(f"v_add_u32 v{T+1}, s34, v{T+1}")
    e(f"ds_write_b64 v{T+1}, v[{VM}:{VLs}] offset:16384")
    e("s_waitcnt lgkmcnt(0)")
    e("s_barrier")
    e(f"s_branch {name}_next")
    k.label(f"{name}_mrg0")
    e("s_barrier")
    e(f"v_lshlrev_b32 v{T}, 4, v{L}")
    e(f"s_mul_i32 s34, s29, 17408")
    e(f"v_add_u32 v{T}, s34, v{T}")
    e(f"v_lshlrev_b32 v{T+1}, 3, v{L}")
    e(f"v_add_u32 v{T+1}, s34, v{T+1}")
    e(f"ds_read_b64 v[{T+2}:{T+3}], v{T+1} offset:16384")
    for i in range(16):
        e(f"ds_read_b128 v[{SA+4*(i%8)}:{SA+4*(i%8)+3}], v{T} offset:{i*1024}")
        if i == 7:
            e("s_waitcnt lgkmcnt(0)")
            e(f"v_max_f32 v{T+4}, v{VM}, v{T+2}")
            e(f"v_sub_f32 v{T+5}, v{VM}, v{T+4}")
            e(f"v_sub_f32 v{T+6}, v{T+2}, v{T+4}")
            e(f"v_exp_f32 v{T+5}, v{T+5}")
            e(f"v_exp_f32 v{T+6}, v{T+6}")
            e("s_nop 0")
            e(f"v_mul_f32 v{VLs}, v{VLs}, v{T+5}")
            e(f"v_fma_f32 v{VLs}, v{T+3}, v{T+6}, v{VLs}")
            for r in range(32):
                e(f"v_mul_f32 v{O+r}, v{O+r}, v{T+5}")
                e(f"v_fma_f32 v{O+r}, v{SA+r}, v{T+6}, v{O+r}")
    e("s_waitcnt lgkmcnt(0)")
    for r in range(32):
        e(f"v_mul_f32 v{O+32+r}, v{O+32+r}, v{T+5}")
        e(f"v_fma_f32 v{O+32+r}, v{SA+r}, v{T+6}, v{O+32+r}")
    e(f"v_mov_b32 v{T+2}, v{VLs}")
    e(f"v_mov_b32 v{T+3}, v{VLs}")
    e("s_nop 1")
    e(f"v_permlane32_swap_b32 v{T+2}, v{T+3}")
    e(f"v_add_f32 v{T+2}, v{T+2}, v{T+3}")
    e(f"v_rcp_f32 v{T+2}, v{T+2}")
    e("s_nop 0")
    for i in range(64):
        e(f"v_mul_f32 v{O+i}, v{O+i}, v{T+2}")
    e(f"v_lshrrev_b32 v{T+3}, 5, v{L}")
    e(f"v_lshlrev_b32 v{T+3}, 3, v{T+3}")
    e(f"v_sub_u32 v{T+3}, v{QO}, v{T+3}")
    for b in range(4):
        for q in range(4):
            r = O + 16 * b + 4 * q
            e(f"v_cvt_pk_bf16_f32 v{r}, v{r}, v{r+1}")
            e(f"v_cvt_pk_bf16_f32 v{r+1}, v{r+2}, v{r+3}")
            e(f"buffer_store_dwordx2 v[{r}:{r+1}], v{T+3}, s[20:23], 0 offen offset:{(32*b+8*q)*2}")
    k.label(f"{name}_next")
    e("s_waitcnt lgkmcnt(0)")
    e("s_barrier")
    e("s_and_b32 s34, s33, 1")
    e("s_cmp_eq_u32 s34, 1")
    e(f"s_cbranch_scc1 {name}_noflip")
    e("s_xor_b32 s37, s37, 0x8000")
    for i in range(8):
        e(f"v_xor_b32 v{AK+i}, 0x8000, v{AK+i}")
    for i in range(4):
        e(f"v_xor_b32 v{AV+i}, 0x8000, v{AV+i}")
    k.label(f"{name}_noflip")
    e("s_add_u32 s40, s40, 1")
    e("s_mov_b32 s33, s32")
    e("s_cmp_eq_u32 s40, 1")
    e(f"s_cbranch_scc1 {name}_block")
    if prof:
        e("s_cmp_lg_u32 s2, 0")
        e(f"s_cbranch_scc1 {name}_done")
        e(f"s_load_dwordx2 s[4:5], s[0:1], {SL_DBG*8}")
        e("s_waitcnt lgkmcnt(0)")
        srd_from(k, 8, (4, 5), 0, 256)
        e("s_lshl_b32 s34, s28, 5")
        e(f"v_mov_b32 v0, s34")
        for i in range(8):
            e(f"v_mov_b32 v1, s{50+i}")
            e(f"buffer_store_dword v1, v0, s[8:11], 0 offen offset:{4*i}")
    k.label(f"{name}_done")
    return kernel_header(name) + k.text() + kernel_footer(name, nv, 70)


if __name__ == "__main__":
    ks = build()
    ks.append(("attn_kernel", gen_attn(prof=("prof" in sys.argv)), 256, 512, 131072))
    order = ["ln1_kernel", "qkv_kernel", "attn_kernel", "oproj_kernel", "ln2_kernel", "ffn1_kernel", "ffn2_kernel"]
    open("cdna_kernels/" + KNAME + ".s", "w").write(emit(ks, order))
```

```python
import sys

KNAME = "sequential_preLN__compressed_kv_cla__dense_activation_gelu__prompt"

SL_X, SL_CKV, SL_WQ, SL_WUK, SL_WUV, SL_WO, SL_BX, SL_W1, SL_B1, SL_W2, SL_B2, SL_OUT, SL_DBG, SL_WS = range(14)

WS_XN = 0x0000000
WS_HN = 0x0200000
WS_H = 0x0400000
WS_G = 0x0600000
WS_Q = 0x1000000
WS_K = 0x2000000
WS_V = 0x3000000
WS_CTX = 0x4000000
WS_PART = 0x5000000

S = 2048
DM = 512
NH = 32
HD = 128
FF = 1376
KSPLIT = 4


class Kern:
    def __init__(self, name):
        self.name = name
        self.L = []

    def e(self, s):
        self.L.append("    " + s)

    def label(self, s):
        self.L.append(s + ":")

    def text(self):
        return "\n".join(self.L) + "\n"


def srd_from(k, dst, ptr, off, nbytes):
    lo, hi = ptr
    if isinstance(off, int) and off == 0:
        k.e(f"s_mov_b32 s{dst}, s{lo}")
        k.e(f"s_and_b32 s{dst+1}, s{hi}, 0xffff")
    else:
        o = f"0x{off:x}" if isinstance(off, int) else off
        k.e(f"s_add_u32 s{dst}, s{lo}, {o}")
        k.e(f"s_addc_u32 s{dst+1}, s{hi}, 0")
        k.e(f"s_and_b32 s{dst+1}, s{dst+1}, 0xffff")
    n = f"0x{nbytes:x}" if isinstance(nbytes, int) else nbytes
    k.e(f"s_mov_b32 s{dst+2}, {n}")
    k.e(f"s_mov_b32 s{dst+3}, 0x00020000")


def kernel_footer(name, vgpr, sgpr):
    acc = (vgpr + 3) // 4 * 4
    return f"""    s_endpgm
.section .rodata,"a"
.p2align 6
.amdhsa_kernel {name}
  .amdhsa_next_free_vgpr {vgpr}
  .amdhsa_next_free_sgpr {sgpr}
  .amdhsa_accum_offset {acc}
  .amdhsa_group_segment_fixed_size 0
  .amdhsa_kernarg_size 112
  .amdhsa_user_sgpr_count 2
  .amdhsa_user_sgpr_kernarg_segment_ptr 1
  .amdhsa_system_sgpr_workgroup_id_x 1
.end_amdhsa_kernel
.text
"""


def kernel_header(name):
    return f""".globl {name}
.p2align 8
.type {name},@function
{name}:
"""


def round_pair(k, a, b, t):
    k.e(f"v_cvt_pk_bf16_f32 v{t}, v{a}, v{b}")
    k.e(f"v_lshlrev_b32 v{a}, 16, v{t}")
    k.e(f"v_and_b32 v{b}, 0xffff0000, v{t}")


def round_one(k, a):
    k.e(f"v_cvt_pk_bf16_f32 v{a}, v{a}, v{a}")
    k.e(f"v_lshlrev_b32 v{a}, 16, v{a}")


def unpack(k, src, d0, d1):
    k.e(f"v_lshlrev_b32 v{d0}, 16, v{src}")
    k.e(f"v_and_b32 v{d1}, 0xffff0000, v{src}")


def gen_ln(name, mode):
    k = Kern(name)
    e = k.e
    VP = 48

    def allsum(v, t):
        for h in range(6):
            e(f"ds_bpermute_b32 v{t}, v{VP+h}, v{v}")
            e("s_waitcnt lgkmcnt(0)")
            e(f"v_add_f32 v{v}, v{v}, v{t}")

    e("s_cmp_ge_u32 s2, 512")
    e(f"s_cbranch_scc1 {name}_done")
    e(f"s_load_dwordx2 s[4:5], s[0:1], {SL_X*8}")
    e(f"s_load_dwordx2 s[6:7], s[0:1], {SL_WS*8}")
    e("v_lshrrev_b32 v1, 6, v0")
    e("v_and_b32 v2, 63, v0")
    e("s_lshl_b32 s3, s2, 2")
    e("v_add_u32 v1, s3, v1")
    e("v_lshlrev_b32 v3, 10, v1")
    e("v_lshl_add_u32 v3, v2, 4, v3")
    for h in range(6):
        e(f"v_xor_b32 v{VP+h}, {1<<h}, v2")
        e(f"v_lshlrev_b32 v{VP+h}, 2, v{VP+h}")
    e("s_waitcnt lgkmcnt(0)")
    srd_from(k, 8, (4, 5), 0, S * DM * 2)
    if mode == 'ln1':
        srd_from(k, 12, (6, 7), WS_XN, S * DM * 2)
    else:
        srd_from(k, 12, (6, 7), WS_HN, S * DM * 2)
        srd_from(k, 16, (6, 7), WS_H, S * DM * 2)
        srd_from(k, 20, (6, 7), WS_PART, KSPLIT * S * DM * 4)
    e("buffer_load_dwordx4 v[4:7], v3, s[8:11], 0 offen")
    if mode == 'ln2':
        e("v_lshlrev_b32 v54, 11, v1")
        e("v_lshl_add_u32 v54, v2, 5, v54")
        for p in range(KSPLIT):
            e(f"s_mov_b32 s24, 0x{p*S*DM*4:x}")
            e(f"buffer_load_dwordx4 v[{16+8*p}:{19+8*p}], v54, s[20:23], s24 offen")
            e(f"buffer_load_dwordx4 v[{20+8*p}:{23+8*p}], v54, s[20:23], s24 offen offset:16")
    e("s_waitcnt vmcnt(0)")
    for i in range(4):
        unpack(k, 4 + i, 8 + 2 * i, 9 + 2 * i)
    if mode == 'ln2':
        for i in range(8):
            e(f"v_add_f32 v{16+i}, v{16+i}, v{24+i}")
            e(f"v_add_f32 v{32+i}, v{32+i}, v{40+i}")
        for i in range(8):
            e(f"v_add_f32 v{16+i}, v{16+i}, v{32+i}")
        for i in range(4):
            round_pair(k, 16 + 2 * i, 17 + 2 * i, 55)
        for i in range(8):
            e(f"v_add_f32 v{8+i}, v{8+i}, v{16+i}")
        for i in range(4):
            e(f"v_cvt_pk_bf16_f32 v{4+i}, v{8+2*i}, v{9+2*i}")
        for i in range(4):
            unpack(k, 4 + i, 8 + 2 * i, 9 + 2 * i)
        e("buffer_store_dwordx4 v[4:7], v3, s[16:19], 0 offen")
    e("v_add_f32 v16, v8, v9")
    for i in range(2, 8):
        e(f"v_add_f32 v16, v16, v{8+i}")
    allsum(16, 17)
    e("s_mov_b32 s24, 0x3b000000")
    e("v_mul_f32 v16, s24, v16")
    e("v_sub_f32 v18, v8, v16")
    e("v_mul_f32 v19, v18, v18")
    for i in range(1, 8):
        e(f"v_sub_f32 v18, v{8+i}, v16")
        e("v_fma_f32 v19, v18, v18, v19")
    allsum(19, 17)
    e("v_mul_f32 v19, s24, v19")
    round_one(k, 16)
    round_one(k, 19)
    e("s_mov_b32 s25, 0x3727c5ac")
    e("v_add_f32 v19, s25, v19")
    round_one(k, 19)
    e("v_sqrt_f32 v19, v19")
    e("s_nop 0")
    round_one(k, 19)
    e("v_rcp_f32 v19, v19")
    for i in range(4):
        e(f"v_sub_f32 v{8+2*i}, v{8+2*i}, v16")
        e(f"v_sub_f32 v{9+2*i}, v{9+2*i}, v16")
        round_pair(k, 8 + 2 * i, 9 + 2 * i, 17)
        e(f"v_mul_f32 v{8+2*i}, v{8+2*i}, v19")
        e(f"v_mul_f32 v{9+2*i}, v{9+2*i}, v19")
        e(f"v_cvt_pk_bf16_f32 v{4+i}, v{8+2*i}, v{9+2*i}")
    e("buffer_store_dwordx4 v[4:7], v3, s[12:15], 0 offen")
    k.label(f"{name}_done")
    return kernel_header(name) + k.text() + kernel_footer(name, 64, 32)


def gen_gemm(name, BM, NS, decode, setup_ptrs, lda, ldw, epi, nwg):
    BN = 128
    MT = BM // 64
    NT = 2
    k = Kern(name)
    e = k.e
    A_BYTES = BM * 128
    W_BYTES = 64 * 256
    STG = A_BYTES + W_BYTES
    nA = BM // 32
    nW = 4
    ACC = 0
    nacc = MT * NT * 16
    FR = nacc
    fsz = MT * 4 + NT * 4
    VA = FR + 2 * fsz
    VW = VA + nA
    VXR = VW + nW
    VWR = VXR + 4
    VT = VWR + NT
    VL = VT + 8
    VWV = VL + 1
    nv = VWV + 24

    def acc(mt, nt):
        return ACC + (mt * NT + nt) * 16

    def xfr(set_, mt):
        return FR + set_ * fsz + mt * 4

    def wfr(set_, nt):
        return FR + set_ * fsz + MT * 4 + nt * 4

    e(f"s_cmp_ge_u32 s2, {nwg}")
    e(f"s_cbranch_scc1 {name}_done")
    e(f"v_and_b32 v{VL}, 63, v0")
    e(f"v_lshrrev_b32 v{VT}, 6, v0")
    e("s_nop 0")
    e(f"v_readfirstlane_b32 s28, v{VT}")
    decode(k)
    setup_ptrs(k)
    L = VL
    for j in range(nA):
        v = VA + j
        e(f"s_mul_i32 s32, s28, {nA}")
        e(f"s_add_u32 s32, s32, {j}")
        e(f"v_lshrrev_b32 v{VT}, 3, v{L}")
        e(f"s_lshl_b32 s33, s32, 3")
        e(f"v_add_u32 v{VT}, s33, v{VT}")
        e(f"v_lshrrev_b32 v{VT+1}, 1, v{VT}")
        e(f"v_and_b32 v{VT+1}, 7, v{VT+1}")
        e(f"v_and_b32 v{VT+2}, 7, v{L}")
        e(f"v_xor_b32 v{VT+1}, v{VT+1}, v{VT+2}")
        e(f"v_lshlrev_b32 v{VT+1}, 4, v{VT+1}")
        e(f"s_mov_b32 s33, {lda}")
        e(f"v_mul_lo_u32 v{v}, v{VT}, s33")
        e(f"v_add_u32 v{v}, v{v}, v{VT+1}")
    for j in range(nW):
        v = VW + j
        e(f"s_lshl_b32 s32, s28, 2")
        e(f"s_add_u32 s32, s32, {j}")
        e(f"v_lshrrev_b32 v{VT}, 4, v{L}")
        e(f"v_lshlrev_b32 v{VT+1}, 2, v{VT}")
        e(f"s_lshl_b32 s33, s32, 2")
        e(f"v_add_u32 v{VT}, s33, v{VT}")
        e(f"v_and_b32 v{VT+2}, 15, v{L}")
        e(f"v_xor_b32 v{VT+1}, v{VT+1}, v{VT+2}")
        e(f"v_lshlrev_b32 v{VT+1}, 4, v{VT+1}")
        e(f"s_mov_b32 s33, {ldw}")
        e(f"v_mul_lo_u32 v{v}, v{VT}, s33")
        e(f"v_add_u32 v{v}, v{v}, v{VT+1}")
    e("s_lshr_b32 s34, s28, 1")
    e("s_and_b32 s35, s28, 1")
    e(f"v_and_b32 v{VT}, 31, v{L}")
    e(f"s_mul_i32 s32, s34, {BM//2}")
    e(f"v_add_u32 v{VT}, s32, v{VT}")
    e(f"v_lshrrev_b32 v{VT+1}, 1, v{VT}")
    e(f"v_and_b32 v{VT+1}, 7, v{VT+1}")
    e(f"v_lshrrev_b32 v{VT+2}, 5, v{L}")
    e(f"v_xor_b32 v{VT+1}, v{VT+1}, v{VT+2}")
    e(f"v_lshlrev_b32 v{VT+1}, 4, v{VT+1}")
    e(f"v_lshl_add_u32 v{VXR}, v{VT}, 7, v{VT+1}")
    for s in range(1, 4):
        e(f"v_xor_b32 v{VXR+s}, {32*s}, v{VXR}")
    e(f"v_lshrrev_b32 v{VT}, 5, v{L}")
    e(f"v_lshlrev_b32 v{VT}, 3, v{VT}")
    e(f"v_bfe_u32 v{VT+1}, v{L}, 2, 2")
    e(f"v_add_u32 v{VT}, v{VT}, v{VT+1}")
    e(f"v_lshlrev_b32 v{VT}, 8, v{VT}")
    e(f"v_bfe_u32 v{VT+2}, v{L}, 4, 1")
    e(f"v_lshlrev_b32 v{VT+2}, 5, v{VT+2}")
    e(f"v_and_b32 v{VT+3}, 3, v{L}")
    e(f"v_lshl_add_u32 v{VT+2}, v{VT+3}, 3, v{VT+2}")
    e(f"v_add_u32 v{VT}, v{VT}, v{VT+2}")
    for nt in range(NT):
        e(f"s_lshl_b32 s32, s35, 1")
        e(f"s_add_u32 s32, s32, {nt}")
        e(f"v_xor_b32 v{VT+3}, s32, v{VT+1}")
        e(f"v_lshl_add_u32 v{VWR+nt}, v{VT+3}, 6, v{VT}")
    for i in range(nacc):
        e(f"v_mov_b32 v{ACC+i}, 0")
    e(f"s_mul_i32 s36, s28, {nA*1024}")
    e(f"s_lshl_b32 s37, s28, 12")
    e(f"s_add_u32 s37, s37, {A_BYTES}")
    e("s_mov_b32 s38, 0")
    e("s_mov_b32 s39, 0")

    def issue(buf):
        base = buf * STG
        for j in range(nA):
            e(f"s_add_u32 m0, s36, {base + j*1024}")
            e("s_nop 0")
            e(f"buffer_load_dwordx4 v{VA+j}, s[8:11], s38 offen lds")
        for j in range(nW):
            e(f"s_add_u32 m0, s37, {base + j*1024}")
            e("s_nop 0")
            e(f"buffer_load_dwordx4 v{VW+j}, s[12:15], s39 offen lds")
        e("s_add_u32 s38, s38, 128")
        e(f"s_add_u32 s39, s39, {64*ldw}")

    def read_frags(buf, s, set_):
        base = buf * STG
        for mt in range(MT):
            e(f"ds_read_b128 v[{xfr(set_,mt)}:{xfr(set_,mt)+3}], v{VXR+s} offset:{base + mt*4096}")
        for nt in range(NT):
            w = wfr(set_, nt)
            e(f"ds_read_b64_tr_b16 v[{w}:{w+1}], v{VWR+nt} offset:{base + A_BYTES + s*4096}")
            e(f"ds_read_b64_tr_b16 v[{w+2}:{w+3}], v{VWR+nt} offset:{base + A_BYTES + s*4096 + 1024}")

    nfr = MT + 2 * NT

    def compute(buf):
        read_frags(buf, 0, 0)
        for s in range(4):
            if s < 3:
                read_frags(buf, s + 1, (s + 1) % 2)
                e(f"s_waitcnt lgkmcnt({nfr})")
            else:
                e("s_waitcnt lgkmcnt(0)")
            st = s % 2
            for mt in range(MT):
                for nt in range(NT):
                    a = acc(mt, nt)
                    e(f"v_mfma_f32_32x32x16_bf16 v[{a}:{a+15}], v[{wfr(st,nt)}:{wfr(st,nt)+3}], "
                      f"v[{xfr(st,mt)}:{xfr(st,mt)+3}], v[{a}:{a+15}]")

    NBUF = epi.get('nbuf', 2)
    nl = nA + nW
    for st in range(NBUF - 1):
        issue(st)
    for st in range(NS):
        inflight = min(NBUF - 2, NS - 1 - st)
        e(f"s_waitcnt vmcnt({inflight*nl})")
        e("s_barrier")
        if st + NBUF - 1 < NS:
            issue((st + NBUF - 1) % NBUF)
        compute(st % NBUF)
    e("s_nop 15")
    e("s_nop 3")
    if epi['kind'] == 'f32':
        ldo = epi['ldo']
        e(f"v_and_b32 v{VT}, 31, v{L}")
        e(f"s_mul_i32 s32, s34, {BM//2}")
        e(f"v_add_u32 v{VT}, s32, v{VT}")
        e(f"s_mov_b32 s33, {ldo}")
        e(f"v_mul_lo_u32 v{VT}, v{VT}, s33")
        e(f"v_lshrrev_b32 v{VT+1}, 5, v{L}")
        e(f"v_lshl_add_u32 v{VT}, v{VT+1}, 4, v{VT}")
        e(f"s_lshl_b32 s32, s35, 8")
        e(f"v_add_u32 v{VT}, s32, v{VT}")
        for mt in range(MT):
            if mt:
                e(f"v_add_u32 v{VT}, {32*ldo}, v{VT}")
            for nt in range(NT):
                for q in range(4):
                    a = acc(mt, nt) + 4 * q
                    e(f"buffer_store_dwordx4 v[{a}:{a+3}], v{VT}, s[16:19], 0 offen offset:{(32*nt+8*q)*4}")
    else:
        PAD = 272
        e("s_barrier")
        if epi.get('bias'):
            e(f"v_lshrrev_b32 v{VT}, 5, v{L}")
            e(f"v_lshlrev_b32 v{VT}, 3, v{VT}")
            e(f"s_lshl_b32 s32, s35, 7")
            e(f"v_add_u32 v{VT}, s32, v{VT}")
            for nt in range(NT):
                for q in range(4):
                    b = FR + (nt * 4 + q) * 2
                    e(f"buffer_load_dwordx2 v[{b}:{b+1}], v{VT}, s[20:23], 0 offen offset:{(32*nt+8*q)*2}")
            e("s_waitcnt vmcnt(0)")
        e(f"v_and_b32 v{VT}, 31, v{L}")
        e(f"s_mul_i32 s32, s34, {BM//2}")
        e(f"v_add_u32 v{VT}, s32, v{VT}")
        e(f"v_mul_u32_u24 v{VT}, {PAD}, v{VT}")
        e(f"v_lshrrev_b32 v{VT+1}, 5, v{L}")
        e(f"v_lshl_add_u32 v{VT}, v{VT+1}, 3, v{VT}")
        e(f"s_lshl_b32 s32, s35, 7")
        e(f"v_add_u32 v{VT}, s32, v{VT}")
        if epi.get('gelu'):
            e("s_mov_b32 s41, 0xc0135761")
            e("s_mov_b32 s42, 0x3d372713")
        for mt in range(MT):
            for nt in range(NT):
                for q in range(4):
                    a = acc(mt, nt) + 4 * q
                    if epi.get('bias') or epi.get('gelu'):
                        round_pair(k, a, a + 1, VT + 2)
                        round_pair(k, a + 2, a + 3, VT + 2)
                    if epi.get('bias'):
                        b = FR + (nt * 4 + q) * 2
                        unpack(k, b, VT + 2, VT + 3)
                        unpack(k, b + 1, VT + 4, VT + 5)
                        for i in range(4):
                            e(f"v_add_f32 v{a+i}, v{a+i}, v{VT+2+i}")
                        if epi.get('gelu'):
                            round_pair(k, a, a + 1, VT + 2)
                            round_pair(k, a + 2, a + 3, VT + 2)
                    if epi.get('gelu'):
                        for i in range(4):
                            x = a + i
                            t = VT + 2 + i
                            e(f"v_mul_f32 v{t}, v{x}, v{x}")
                            e(f"v_fma_f32 v{t}, v{t}, s42, 1.0")
                            e(f"v_mul_f32 v{t}, v{t}, v{x}")
                            e(f"v_mul_f32 v{t}, s41, v{t}")
                            e(f"v_exp_f32 v{t}, v{t}")
                        e("s_nop 0")
                        for i in range(4):
                            t = VT + 2 + i
                            e(f"v_add_f32 v{t}, 1.0, v{t}")
                            e(f"v_rcp_f32 v{t}, v{t}")
                        e("s_nop 0")
                        for i in range(4):
                            e(f"v_mul_f32 v{a+i}, v{a+i}, v{VT+2+i}")
                    e(f"v_cvt_pk_bf16_f32 v{a}, v{a}, v{a+1}")
                    e(f"v_cvt_pk_bf16_f32 v{a+1}, v{a+2}, v{a+3}")
                    e(f"ds_write_b64 v{VT}, v[{a}:{a+1}] offset:{mt*32*PAD + (32*nt+8*q)*2}")
        e("s_waitcnt lgkmcnt(0)")
        e("s_barrier")
        ldo = epi['ldo']
        nrow = BM // 16
        e(f"v_lshrrev_b32 v{VT}, 4, v0")
        k.L.pop()
        e(f"s_lshl_b32 s32, s28, 6")
        e(f"v_add_u32 v{VT+6}, s32, v{L}")
        e(f"v_lshrrev_b32 v{VT}, 4, v{VT+6}")
        e(f"v_and_b32 v{VT+1}, 15, v{VT+6}")
        e(f"v_mul_u32_u24 v{VT+2}, {PAD}, v{VT}")
        e(f"v_lshl_add_u32 v{VT+2}, v{VT+1}, 4, v{VT+2}")
        e(f"s_mov_b32 s33, {ldo}")
        e(f"v_mul_lo_u32 v{VT+3}, v{VT}, s33")
        e(f"v_lshl_add_u32 v{VT+3}, v{VT+1}, 4, v{VT+3}")
        if epi.get('nmask') is not None:
            e(f"s_lshl_b32 s32, s30, 7")
            e(f"v_lshlrev_b32 v{VT+4}, 3, v{VT+1}")
            e(f"v_add_u32 v{VT+4}, s32, v{VT+4}")
            e(f"v_cmp_gt_u32 vcc, {epi['nmask']}, v{VT+4}")
            e("s_and_saveexec_b64 s[44:45], vcc")
            e(f"s_cbranch_execz {name}_done")
        for i in range(nrow):
            d = ACC + 4 * (i % 8)
            e(f"ds_read_b128 v[{d}:{d+3}], v{VT+2} offset:{i*16*PAD}")
            if epi.get('resid'):
                r = ACC + 32 + 4 * (i % 8)
                e(f"s_mov_b32 s32, {i*16*ldo}")
                e(f"buffer_load_dwordx4 v[{r}:{r+3}], v{VT+3}, s[24:27], s32 offen")
            if i % 8 == 7 or i == nrow - 1:
                i0 = i - (i % 8)
                e("s_waitcnt vmcnt(0) lgkmcnt(0)")
                for ii in range(i0, i + 1):
                    d = ACC + 4 * (ii % 8)
                    if epi.get('resid'):
                        r = ACC + 32 + 4 * (ii % 8)
                        for j in range(4):
                            unpack(k, d + j, VT + 4, VT + 5)
                            unpack(k, r + j, VT + 6, VT + 7)
                            e(f"v_add_f32 v{VT+4}, v{VT+4}, v{VT+6}")
                            e(f"v_add_f32 v{VT+5}, v{VT+5}, v{VT+7}")
                            e(f"v_cvt_pk_bf16_f32 v{d+j}, v{VT+4}, v{VT+5}")
                    e(f"s_mov_b32 s32, {ii*16*ldo}")
                    e(f"buffer_store_dwordx4 v[{d}:{d+3}], v{VT+3}, s[16:19], s32 offen")
    k.label(f"{name}_done")
    lds = max(NBUF * STG, BM * 272)
    return kernel_header(name) + k.text() + kernel_footer(name, nv, 48), lds


def build():
    kernels = []

    kernels.append(("ln1_kernel", gen_ln("ln1_kernel", 'ln1'), 512, 256, 0))

    def dec_qkv(k):
        k.e("s_lshr_b32 s31, s2, 9")
        k.e("s_and_b32 s32, s2, 511")
        k.e("s_lshr_b32 s29, s32, 5")
        k.e("s_and_b32 s30, s32, 31")

    def ptr_qkv(k):
        e = k.e
        e(f"s_load_dwordx2 s[4:5], s[0:1], {SL_WS*8}")
        e(f"s_load_dwordx2 s[6:7], s[0:1], {SL_CKV*8}")
        e(f"s_load_dwordx4 s[44:47], s[0:1], {SL_WQ*8}")
        e(f"s_load_dwordx2 s[42:43], s[0:1], {SL_WUV*8}")
        e("s_waitcnt lgkmcnt(0)")
        e("s_cmp_eq_u32 s31, 0")
        e("s_cselect_b32 s6, s4, s6")
        e("s_cselect_b32 s7, s5, s7")
        e("s_cmp_eq_u32 s31, 1")
        e("s_cselect_b32 s44, s46, s44")
        e("s_cselect_b32 s45, s47, s45")
        e("s_cmp_eq_u32 s31, 2")
        e("s_cselect_b32 s44, s42, s44")
        e("s_cselect_b32 s45, s43, s45")
        e("s_lshl_b32 s32, s29, 17")
        e(f"s_sub_u32 s33, 0x{S*DM*2:x}, s32")
        srd_from(k, 8, (6, 7), "s32", "s33")
        e("s_lshl_b32 s32, s30, 8")
        e(f"s_sub_u32 s33, 0x{DM*NH*HD*2:x}, s32")
        srd_from(k, 12, (44, 45), "s32", "s33")
        e("s_lshl_b32 s32, s31, 24")
        e("s_lshl_b32 s33, s29, 20")
        e("s_add_u32 s32, s32, s33")
        e("s_lshl_b32 s33, s30, 8")
        e("s_add_u32 s32, s32, s33")
        e(f"s_add_u32 s32, s32, 0x{WS_Q:x}")
        e(f"s_sub_u32 s33, 0x{WS_Q + 3*S*NH*HD*2:x}, s32")
        srd_from(k, 16, (4, 5), "s32", "s33")

    t, lds = gen_gemm("qkv_kernel", 128, 8, dec_qkv, ptr_qkv, DM * 2, NH * HD * 2,
                      dict(kind='bf16', ldo=NH * HD * 2), 1536)
    kernels.append(("qkv_kernel", t, 1536, 256, lds))

    KCH = NH * HD // KSPLIT

    def dec_op(k):
        k.e("s_lshr_b32 s31, s2, 6")
        k.e("s_and_b32 s32, s2, 63")
        k.e("s_lshr_b32 s29, s32, 2")
        k.e("s_and_b32 s30, s32, 3")

    def ptr_op(k):
        e = k.e
        e(f"s_load_dwordx2 s[4:5], s[0:1], {SL_WS*8}")
        e(f"s_load_dwordx2 s[6:7], s[0:1], {SL_WO*8}")
        e("s_waitcnt lgkmcnt(0)")
        e("s_lshl_b32 s32, s29, 20")
        e(f"s_mul_i32 s33, s31, {KCH*2}")
        e("s_add_u32 s32, s32, s33")
        e(f"s_add_u32 s32, s32, 0x{WS_CTX:x}")
        e(f"s_sub_u32 s33, 0x{WS_CTX + S*NH*HD*2:x}, s32")
        srd_from(k, 8, (4, 5), "s32", "s33")
        e(f"s_mul_i32 s32, s31, {KCH*DM*2}")
        e("s_lshl_b32 s33, s30, 8")
        e("s_add_u32 s32, s32, s33")
        e(f"s_sub_u32 s33, 0x{NH*HD*DM*2:x}, s32")
        srd_from(k, 12, (6, 7), "s32", "s33")
        e(f"s_lshl_b32 s32, s31, 22")
        e("s_lshl_b32 s33, s29, 18")
        e("s_add_u32 s32, s32, s33")
        e("s_lshl_b32 s33, s30, 9")
        e("s_add_u32 s32, s32, s33")
        e(f"s_add_u32 s32, s32, 0x{WS_PART:x}")
        e(f"s_sub_u32 s33, 0x{WS_PART + KSPLIT*S*DM*4:x}, s32")
        srd_from(k, 16, (4, 5), "s32", "s33")

    t, lds = gen_gemm("oproj_kernel", 128, KCH // 64, dec_op, ptr_op, NH * HD * 2, DM * 2,
                      dict(kind='f32', ldo=DM * 4), 16 * 4 * KSPLIT)
    kernels.append(("oproj_kernel", t, 16 * 4 * KSPLIT, 256, lds))

    kernels.append(("ln2_kernel", gen_ln("ln2_kernel", 'ln2'), 512, 256, 0))

    def dec_f1(k):
        k.e("s_mov_b32 s31, 0")
        k.e("s_mul_hi_u32 s30, s2, 0x10000000")
        k.e("s_lshr_b32 s30, s2, 4")
        k.e("s_and_b32 s29, s2, 15")

    def ptr_f1(k):
        e = k.e
        e(f"s_load_dwordx2 s[4:5], s[0:1], {SL_WS*8}")
        e(f"s_load_dwordx2 s[6:7], s[0:1], {SL_W1*8}")
        e(f"s_load_dwordx2 s[42:43], s[0:1], {SL_B1*8}")
        e("s_waitcnt lgkmcnt(0)")
        e("s_lshl_b32 s32, s29, 17")
        e(f"s_add_u32 s32, s32, 0x{WS_HN:x}")
        e(f"s_sub_u32 s33, 0x{WS_HN + S*DM*2:x}, s32")
        srd_from(k, 8, (4, 5), "s32", "s33")
        e("s_lshl_b32 s32, s30, 8")
        e(f"s_sub_u32 s33, 0x{DM*FF*2:x}, s32")
        srd_from(k, 12, (6, 7), "s32", "s33")
        e(f"s_mul_i32 s32, s29, {128*FF*2}")
        e("s_lshl_b32 s33, s30, 8")
        e("s_add_u32 s32, s32, s33")
        e(f"s_add_u32 s32, s32, 0x{WS_G:x}")
        e(f"s_sub_u32 s33, 0x{WS_G + S*FF*2:x}, s32")
        srd_from(k, 16, (4, 5), "s32", "s33")
        e("s_lshl_b32 s32, s30, 8")
        e(f"s_sub_u32 s33, 0x{FF*2:x}, s32")
        srd_from(k, 20, (42, 43), "s32", "s33")

    t, lds = gen_gemm("ffn1_kernel", 128, 8, dec_f1, ptr_f1, DM * 2, FF * 2,
                      dict(kind='bf16', ldo=FF * 2, bias=True, gelu=True, nmask=FF), 16 * 11)
    kernels.append(("ffn1_kernel", t, 16 * 11, 256, lds))

    def dec_f2(k):
        k.e("s_mov_b32 s31, 0")
        k.e("s_lshr_b32 s29, s2, 2")
        k.e("s_and_b32 s30, s2, 3")

    def ptr_f2(k):
        e = k.e
        e(f"s_load_dwordx2 s[4:5], s[0:1], {SL_WS*8}")
        e(f"s_load_dwordx2 s[6:7], s[0:1], {SL_W2*8}")
        e(f"s_load_dwordx2 s[42:43], s[0:1], {SL_B2*8}")
        e(f"s_load_dwordx2 s[44:45], s[0:1], {SL_OUT*8}")
        e("s_waitcnt lgkmcnt(0)")
        e(f"s_mul_i32 s32, s29, {64*FF*2}")
        e(f"s_add_u32 s32, s32, 0x{WS_G:x}")
        e(f"s_sub_u32 s33, 0x{WS_G + S*FF*2:x}, s32")
        srd_from(k, 8, (4, 5), "s32", "s33")
        e("s_lshl_b32 s32, s30, 8")
        e(f"s_sub_u32 s33, 0x{FF*DM*2:x}, s32")
        srd_from(k, 12, (6, 7), "s32", "s33")
        e("s_lshl_b32 s32, s29, 16")
        e("s_lshl_b32 s33, s30, 8")
        e("s_add_u32 s32, s32, s33")
        e(f"s_sub_u32 s33, 0x{S*DM*2:x}, s32")
        srd_from(k, 16, (44, 45), "s32", "s33")
        e(f"s_add_u32 s32, s32, 0x{WS_H:x}")
        e(f"s_sub_u32 s33, 0x{WS_H + S*DM*2:x}, s32")
        srd_from(k, 24, (4, 5), "s32", "s33")
        e("s_lshl_b32 s32, s30, 8")
        e(f"s_sub_u32 s33, 0x{DM*2:x}, s32")
        srd_from(k, 20, (42, 43), "s32", "s33")

    t, lds = gen_gemm("ffn2_kernel", 64, 22, dec_f2, ptr_f2, FF * 2, DM * 2,
                      dict(kind='bf16', ldo=DM * 2, bias=True, resid=True), 32 * 4)
    kernels.append(("ffn2_kernel", t, 32 * 4, 256, lds))
    return kernels


def emit(kernels, order):
    hdr = open("cdna_kernels/" + KNAME + ".s.ref").read().split("; Override launch")[0]
    out = hdr
    byname = {k[0]: k for k in kernels}
    for n in order:
        _, _, g, b, lds = byname[n]
        out += f"; @launch kernel={n} grid=({g},1,1) block=({b},1,1) lds={lds}\n"
    out += '.amdgcn_target "amdgcn-amd-amdhsa--gfx950"\n.text\n'
    for n in dict.fromkeys(order):
        out += byname[n][1]
    return out


if __name__ == "__main__":
    ks = build()
    order = sys.argv[1:] or [k[0] for k in ks]
    open("cdna_kernels/" + KNAME + ".s", "w").write(emit(ks, order))
```
